```python
import torch

def _softmax(x, axis=-1):
    return torch.softmax(x, dim=axis)
def _gelu(x):
    return torch.nn.functional.gelu(x, approximate="tanh")
def _silu(x):
    return torch.nn.functional.silu(x)
def _sigmoid(x):
    return torch.sigmoid(x)
def _layernorm(x, axis=-1, eps=1e-5):
    m = x.mean(dim=axis, keepdim=True)
    v = x.var(dim=axis, keepdim=True, unbiased=False)
    return (x - m) / torch.sqrt(v + eps)
def _scatter_add(tgt, idx, src, axis=0):
    return tgt.clone().index_add_(axis, idx, src)
def _segment_sum(src, seg, n):
    out = torch.zeros((n,) + src.shape[1:], dtype=src.dtype)
    return out.index_add_(0, seg, src)
def _pad(x, pw):
    flat = tuple(v for pair in reversed(pw) for v in pair)
    return torch.nn.functional.pad(x, flat)

kernel_name = 'recurrent_scan__spectral_gfnet__moe_arch_mod__prompt'

def setup_inputs():

    _w = (lambda a: (lambda t: t.to(torch.bfloat16) if t.is_floating_point() else t)(torch.as_tensor(a)))
    def _A_setup():
        B, S, D = 1, 2048, 1024
        Df = D // 2 + 1
        return {
            "x": _w((lambda *s: torch.randn(*s, dtype=torch.bfloat16) * 0.05)(B, S, D)),
            "w_r": _w((lambda *s: torch.randn(*s, dtype=torch.bfloat16) * 0.05)(S, Df) * 0.02),
            "w_i": _w((lambda *s: torch.randn(*s, dtype=torch.bfloat16) * 0.05)(S, Df) * 0.02),
        }
    _A_in = _A_setup()

    def _B_setup():
        B, S, D, F, C = 1, 2048, 1024, 3584, 1
        return {
            "x": _w((lambda *s: torch.randn(*s, dtype=torch.bfloat16) * 0.05)(B, S, D)),
            "w_r": _w((lambda *s: torch.randn(*s, dtype=torch.bfloat16) * 1.6)(D)),
            "w_gate": _w((lambda *s: torch.randn(*s, dtype=torch.bfloat16) * 0.1)(D, F)),
            "w_up": _w((lambda *s: torch.randn(*s, dtype=torch.bfloat16) * 0.1)(D, F)),
            "w_down": _w((lambda *s: torch.randn(*s, dtype=torch.bfloat16) * 0.1)(F, D)),
        }
    _B_in = _B_setup()

    return {
        "A_x": _A_in["x"],
        "A_w_r": _A_in["w_r"],
        "A_w_i": _A_in["w_i"],
        "B_x": _B_in["x"],
        "B_w_r": _B_in["w_r"],
        "B_w_gate": _B_in["w_gate"],
        "B_w_up": _B_in["w_up"],
        "B_w_down": _B_in["w_down"],
    }

def reference(A_x, A_w_r, A_w_i, B_x, B_w_r, B_w_gate, B_w_up, B_w_down):
    def _A_ref(x, w_r, w_i):
        B, S, D = x.shape
        X = (lambda x, axes=(-2,-1): torch.fft.rfft2(x.float(), dim=axes))(x, axes=(-2, -1))
        W = w_r + 1j * w_i
        X = X * W
        y = (lambda x, s, axes=(-2,-1): torch.fft.irfft2(x, s=s, dim=axes).to(torch.bfloat16))(X, (S, D), axes=(-2, -1))
        return y

    def _B_ref(x, w_r, w_gate, w_up, w_down):
        B, S, D = x.shape
        C = 1
        r = x @ w_r
        idx = torch.argsort(-r, axis=-1)[:, :C]
        idx_e = (lambda x, n, axis: torch.repeat_interleave(x, n, dim=axis))(idx.reshape(B, C, 1), D, axis=2)
        x_sel = (lambda x, i, axis: torch.take_along_dim(x, i, dim=axis))(x, idx_e, axis=1)
        g = _silu(x_sel @ w_gate)
        u = x_sel @ w_up
        y = (g * u) @ w_down
        r_sel = _sigmoid((lambda x, i, axis: torch.take_along_dim(x, i, dim=axis))(r, idx, axis=1))
        y = y * r_sel.reshape(B, C, 1)
        b_off = (torch.arange(B) * S).reshape(B, 1)
        flat_idx = (idx + b_off).reshape(B * C)
        zero = (x * 0.0).reshape(B * S, D)
        upd = _scatter_add(zero, flat_idx, y.reshape(B * C, D), axis=0)
        return x + upd.reshape(B, S, D)

    x = A_x
    xn = _layernorm(x, axis=-1)
    s = _A_ref(xn, A_w_r, A_w_i)
    g = _silu(_B_ref(xn, B_w_r, B_w_gate, B_w_up, B_w_down))
    return x + s * g
```

```python
import re

TRANS = ("v_exp_f32","v_log_f32","v_rcp_f32","v_rsq_f32","v_sqrt_f32","v_sin_f32","v_cos_f32","v_rcp_iflag_f32")
REG_RE = re.compile(r"(?<![\w.])(-?\|?(?:abs\()?)([vsa])(?:(\d+)|\[(\d+):(\d+)\])")

def regs_of(tok):
    tok = tok.strip()
    out = set()
    if tok.startswith("vcc"):
        return {("s","vcc")}
    if tok == "exec" or tok.startswith("exec_"):
        return {("s","exec")}
    if tok == "m0":
        return {("s","m0")}
    m = re.match(r"^-?\|?(?:abs\()?([vsa])(?:(\d+)|\[(\d+):(\d+)\])\)?\|?$", tok)
    if m:
        k = m.group(1)
        if m.group(2) is not None:
            out.add((k,int(m.group(2))))
        else:
            for r in range(int(m.group(3)), int(m.group(4))+1): out.add((k,r))
    return out

class Ins:
    __slots__=("text","op","ops","kind","vw","vr","sw","sr","mfma_c","mfma_d","passes","is_label","dpp","nop")
    def __init__(self, text):
        self.text = text
        t = text.split(";")[0].split("//")[0].strip()
        self.is_label = t.endswith(":") or t.startswith(".") or t == ""
        self.vw=set(); self.vr=set(); self.sw=set(); self.sr=set()
        self.kind="other"; self.mfma_c=set(); self.mfma_d=set(); self.passes=0; self.dpp=False; self.nop=0
        self.op=""; self.ops=[]
        if self.is_label: return
        parts = t.split(None,1)
        op = parts[0]; self.op = op
        rest = parts[1] if len(parts)>1 else ""
        ops=[]; cur=""; depth=0
        for ch in rest:
            if ch in "[(": depth+=1
            if ch in "])": depth-=1
            if ch=="," and depth==0: ops.append(cur.strip()); cur=""
            else: cur+=ch
        if cur.strip(): ops.append(cur.strip())
        mods=""
        if ops:
            last = ops[-1].split(None,1)
            ops[-1]=last[0]
            if len(last)>1: mods=last[1]
        self.ops=ops
        def V(s): return {r for r in s if r[0] in "va"}
        def S(s): return {r for r in s if r[0]=="s"}
        R=[regs_of(o) for o in ops]
        allsrc=lambda i: set().union(*R[i:]) if len(R)>i else set()
        if op=="s_nop":
            self.kind="nop"; self.nop=int(ops[0],0); return
        if op.startswith("v_mfma"):
            self.kind="mfma"
            self.mfma_d=V(R[0]); self.vw=V(R[0]); self.vr=V(R[1])|V(R[2])|V(R[3]); self.mfma_c=V(R[3])
            self.passes = 8 if "32x32" in op else 4
            return
        if op.startswith("v_"):
            self.kind="valu"
            self.dpp = ("_dpp" in op) or ("row_" in mods) or ("quad_perm" in mods) or ("wave_" in mods)
            if op.startswith("v_cmp"):
                self.sw=S(R[0]); src=allsrc(1)
                if op.startswith("v_cmpx"): self.sw|={("s","exec")}
            elif op in ("v_readlane_b32","v_readfirstlane_b32"):
                self.sw=S(R[0]); src=allsrc(1); self.kind="readlane"
            elif op.startswith("v_swap") or op.startswith("v_permlane16_swap") or op.startswith("v_permlane32_swap"):
                self.vw=V(R[0])|V(R[1]); src=R[0]|R[1]
                if "permlane" in op: self.kind="permlane"
            elif op.startswith(("v_add_co","v_sub_co","v_addc_co","v_subb_co","v_subrev_co")):
                self.vw=V(R[0]); self.sw=S(R[1]); src=allsrc(2)
            elif op.startswith(("v_fmac","v_dot2c","v_pk_fmac","v_mac")) :
                self.vw=V(R[0]); src=allsrc(0)
            elif op.startswith("v_writelane"):
                self.vw=V(R[0]); src=allsrc(0); self.kind="readlane"
            else:
                self.vw=V(R[0]); src=allsrc(1)
                if self.dpp: src = src | V(R[0])
            if op.startswith("v_cndmask") and len(ops)==3: src|={("s","vcc")}
            if op.startswith(("v_addc_co","v_subb_co")) : pass
            if op.startswith("v_div_fmas"): src|={("s","vcc")}
            self.vr=V(src); self.sr=S(src)
            base = op.replace("_e32","").replace("_e64","")
            if base in TRANS: self.kind="trans"
            return
        if op.startswith(("buffer_","global_","flat_")):
            self.kind="vmem"
            lds = " lds" in (" "+mods+" ") or "_lds_" in op
            if "load" in op and not lds:
                self.vw=V(R[0]); src=allsrc(1)
            elif "atomic" in op:
                src=allsrc(0)
                if "sc0" in mods: self.vw=V(R[0])
            elif op in ("buffer_wbl2","buffer_inv"):
                src=set()
            else:
                src=allsrc(0)
            self.vr=V(src); self.sr=S(src)
            if lds: self.sr|={("s","m0")}; self.kind="vmem_lds"
            if "store" in op and ("x3" in op or "x4" in op): self.kind="vmem_wide"
            return
        if op.startswith("ds_"):
            self.kind="ds"
            if op.startswith(("ds_read","ds_bpermute","ds_permute","ds_swizzle")) or "_rtn" in op:
                self.vw=V(R[0]); src=allsrc(1)
            else: src=allsrc(0)
            self.vr=V(src)
            return
        if op.startswith("s_"):
            self.kind="salu"
            if op.startswith(("s_cmp","s_bitcmp","s_cbranch","s_branch","s_waitcnt","s_barrier","s_endpgm","s_sleep","s_setprio","s_setreg")):
                src=allsrc(0)
            else:
                self.sw=S(R[0]) if R else set(); src=allsrc(1)
                if "saveexec" in op: self.sw|={("s","exec")}
            self.sr=S(src)
            return

def need(prev, cur):
    n=0
    pv = prev.kind in ("valu","trans","readlane","permlane")
    if pv and cur.kind=="mfma" and (prev.vw & cur.vr): n=max(n,2)
    if prev.kind=="mfma":
        big = {4:8, 8:12}[prev.passes]
        if cur.kind=="mfma":
            ab = cur.vr - cur.mfma_c
            a_b = regs_of(cur.ops[1])|regs_of(cur.ops[2])
            if prev.mfma_d & a_b: n=max(n,big)
            if prev.mfma_d & cur.mfma_c:
                if prev.mfma_d==cur.mfma_c and prev.passes==cur.passes: pass
                else: n=max(n,{4:6,8:10}[prev.passes])
            elif prev.mfma_d & cur.mfma_d:
                n=max(n,big)
        else:
            if prev.mfma_d & (cur.vr|cur.vw): n=max(n,big)
        if cur.kind in ("valu","trans","readlane","permlane") and (prev.mfma_c & cur.vw) : n=max(n,{4:3,8:7}[prev.passes])
    if prev.kind=="trans" and cur.kind in ("valu","readlane","permlane","mfma") and (prev.vw & cur.vr): n=max(n,1)
    if prev.kind=="trans" and cur.kind in ("vmem","vmem_wide","ds","vmem_lds") and (prev.vw & cur.vr): n=max(n,1)
    if pv and cur.dpp and (prev.vw & cur.vr): n=max(n,2)
    if pv and cur.kind=="permlane" and (prev.vw & cur.vr): n=max(n,2)
    if pv and cur.kind=="readlane" and (prev.vw & cur.vr): n=max(n,1)
    if pv and prev.sw:
        if cur.kind in ("valu","trans","permlane") and (prev.sw & cur.sr): n=max(n,2)
        if cur.kind=="readlane" and (prev.sw & cur.sr): n=max(n,4)
        if cur.kind.startswith("vmem") and (prev.sw & cur.sr): n=max(n,5)
        if ("s","exec") in prev.sw:
            if cur.dpp: n=max(n,5)
            if cur.kind in("readlane","permlane","mfma"): n=max(n,4)
    if prev.op.startswith("v_dot") and (prev.vw & (cur.vr|cur.vw)):
        same = prev.op.replace("_e32","")==cur.op.replace("_e32","")
        if not same: n=max(n,3)
        else:
            srcs = regs_of(cur.ops[1])|regs_of(cur.ops[2])
            if prev.vw & srcs: n=max(n,3)
    if prev.kind=="vmem_wide" and cur.kind in ("valu","trans","readlane","permlane","mfma","ds","vmem") and (prev.vr & cur.vw): n=max(n,2)
    if prev.kind=="salu" and ("s","m0") in prev.sw and cur.kind=="vmem_lds": n=max(n,1)
    return n

class Asm:
    def __init__(self):
        self.lines=[]
    def __call__(self, text):
        for ln in text.split("\n"):
            if ln.strip()=="" : continue
            self.lines.append(ln.rstrip())
    def label(self, name): self.lines.append(name+":")
    def text(self): return "\n".join(self.lines)+"\n"

def pad_hazards(lines, window=24):
    out=[]; hist=[]
    n_added=0
    for ln in lines:
        s=ln.strip()
        if s=="" or s.startswith(";") or s.startswith("//"):
            out.append(ln); continue
        ins=Ins(s)
        if ins.is_label:
            out.append(ln); continue
        dist=0; pad=0
        for p in reversed(hist[-window:]):
            req=need(p,ins)
            if req>dist: pad=max(pad,req-dist)
            dist += (p.nop+1) if p.kind=="nop" else 1
            if dist>=13: break
        while pad>0:
            k=min(pad,16)
            nop=Ins("s_nop %d"%(k-1)); out.append("    s_nop %d"%(k-1)); hist.append(nop); pad-=k; n_added+=1
        out.append(ln); hist.append(ins)
    return out, n_added
```

```python
from asmgen import *
from tables import BLK, ORDER, table_words
WS_A   = 0x000000
A_JP   = 17*256*128
A_KP   = 256*128
WS_B   = 0x500000
B_IP   = 264*128
WS_ST  = 0xA00000
WS_CAND= 0xA10000
WS_H   = 0xA20000
WS_Y   = 0xA30000
WS_SIZE= 0x1000000
S_X,S_WR,S_WI,S_BX,S_BW,S_G,S_U,S_D = 4,6,8,10,12,14,16,18
S_OUT,S_DBG,S_WS = 20,22,24
R_X,R_WS,R_T,R_OUT,R_WR,R_WI,R_BW,R_G,R_U,R_D = 28,32,36,40,44,48,52,56,60,64
def srd(r): return f"s[{r}:{r+3}]"
def mk_srd(a, r, p, size):
    a(f"""
    s_mov_b32 s{r}, s{p}
    s_mov_b32 s{r+1}, s{p+1}
    s_mov_b32 s{r+2}, {size}
    s_mov_b32 s{r+3}, 0x00020000""")
def load_args(a):
    a("""
    s_load_dwordx16 s[4:19], s[0:1], 0
    s_load_dwordx4 s[20:23], s[0:1], 64
    s_load_dwordx2 s[24:25], s[0:1], 80""")
def mk_table_srd(a, lab):
    a(f"""
    s_getpc_b64 s[{R_T}:{R_T+1}]
{lab}_pc:
    s_add_u32 s{R_T}, s{R_T}, fft_tables-{lab}_pc
    s_addc_u32 s{R_T+1}, s{R_T+1}, 0
    s_mov_b32 s{R_T+2}, {len(ORDER)*1024}
    s_mov_b32 s{R_T+3}, 0x00020000""")
def v4(r): return f"v[{r}:{r+3}]"
def v2(r): return f"v[{r}:{r+1}]"
def interleave(a, main, fill, per=2):
    fill=list(fill)
    for m in main:
        a(m)
        for _ in range(per):
            if fill: a(fill.pop(0))
    for f in fill: a(f)
def dpp_sum_steps(v):
    return [f"    v_add_f32_dpp v{v}, v{v}, v{v} row_shr:1 row_mask:0xf bank_mask:0xf",
            f"    v_add_f32_dpp v{v}, v{v}, v{v} row_shr:2 row_mask:0xf bank_mask:0xf",
            f"    v_add_f32_dpp v{v}, v{v}, v{v} row_shr:4 row_mask:0xf bank_mask:0xf",
            f"    v_add_f32_dpp v{v}, v{v}, v{v} row_shr:8 row_mask:0xf bank_mask:0xf",
            f"    v_add_f32_dpp v{v}, v{v}, v{v} row_bcast:15 row_mask:0xa bank_mask:0xf",
            f"    v_add_f32_dpp v{v}, v{v}, v{v} row_bcast:31 row_mask:0xc bank_mask:0xf"]
def table_data():
    w = table_words()
    s = ".p2align 8\nfft_tables:\n"
    for i in range(0, len(w), 8):
        s += "    .long " + ",".join("0x%x" % int(x) for x in w[i:i+8]) + "\n"
    return s
def kdesc(name, vgpr, sgpr=102):
    acc = (vgpr + 3)//4*4
    return f""".amdhsa_kernel {name}
  .amdhsa_next_free_vgpr {vgpr}
  .amdhsa_next_free_sgpr {sgpr}
  .amdhsa_accum_offset {acc}
  .amdhsa_group_segment_fixed_size 0
  .amdhsa_kernarg_size 88
  .amdhsa_user_sgpr_count 2
  .amdhsa_user_sgpr_kernarg_segment_ptr 1
  .amdhsa_system_sgpr_workgroup_id_x 1
  .amdhsa_float_denorm_mode_32 3
  .amdhsa_float_denorm_mode_16_64 3
.end_amdhsa_kernel
"""
```

```python
from common import *
from p1 import sW,sT0,sT1,sT2,sT3,sT4,sT5,vLane,vL16,vG,vB,lane_setup
from p3 import argmax_keys, argmax_finish, key_decode, sIdx, sRsel, silu_pair
sF0, sMb2, sRs2 = 83, 87, 88
def ln_natural(a, X, xf, DB, acc, tmpv, sMb, sRs):
    a0,a1,a2,a3 = acc,acc+1,acc+2,acc+3
    u0,u1,u2 = tmpv,tmpv+1,tmpv+2
    a(f"    s_mov_b32 s{sT1}, 0x3f803f80\n    v_mov_b32 v{a0}, 0\n    v_mov_b32 v{a1}, 0")
    for q in range(8): a(f"    v_dot2c_f32_bf16 v{a0 + (q&1)}, s{sT1}, v{X+q}")
    a(f"    v_add_f32 v{a0}, v{a0}, v{a1}")
    unp=[]
    for q in range(8):
        unp.append(f"    v_lshlrev_b32 v{xf+2*q}, 16, v{X+q}")
        unp.append(f"    v_and_b32 v{xf+2*q+1}, 0xffff0000, v{X+q}")
    interleave(a, dpp_sum_steps(a0), unp, 2)
    a(f"""
    v_readlane_b32 s{sT2}, v{a0}, 63
    v_mov_b32 v{u0}, 0x3a800000
    v_mul_f32 v{u0}, s{sT2}, v{u0}
    v_cvt_pk_bf16_f32 v{u1}, v{u0}, v{u0}
    v_and_b32 v{u1}, 0xffff0000, v{u1}
    v_sub_f32 v{u0}, v{u0}, v{u1}""")
    for k in range(16): a(f"    v_sub_f32 v{xf+k}, v{xf+k}, v{u1}")
    for k in range(4): a(f"    v_mul_f32 v{acc+k}, v{xf+k}, v{xf+k}")
    for k in range(4,16): a(f"    v_fmac_f32 v{acc+(k&3)}, v{xf+k}, v{xf+k}")
    a(f"""
    v_add_f32 v{a0}, v{a0}, v{a1}
    v_add_f32 v{a2}, v{a2}, v{a3}
    v_add_f32 v{a0}, v{a0}, v{a2}""")
    fill=[]
    for q in range(8): fill.append(f"    v_cvt_pk_bf16_f32 v{DB+q}, v{xf+2*q}, v{xf+2*q+1}")
    for q in range(8):
        fill.append(f"    v_lshlrev_b32 v{xf+2*q}, 16, v{DB+q}")
        fill.append(f"    v_and_b32 v{xf+2*q+1}, 0xffff0000, v{DB+q}")
    interleave(a, dpp_sum_steps(a0), fill, 3)
    a(f"""
    v_readlane_b32 s{sT2}, v{a0}, 63
    v_mov_b32 v{u1}, 0x3a800000
    v_mul_f32 v{u1}, s{sT2}, v{u1}
    v_fma_f32 v{u1}, -v{u0}, v{u0}, v{u1}
    v_max_f32 v{u1}, 0, v{u1}
    v_cvt_pk_bf16_f32 v{u1}, v{u1}, v{u1}
    v_and_b32 v{u1}, 0xffff0000, v{u1}
    v_add_f32 v{u1}, 0x3727c5ac, v{u1}
    v_cvt_pk_bf16_f32 v{u1}, v{u1}, v{u1}
    v_and_b32 v{u1}, 0xffff0000, v{u1}
    v_sqrt_f32 v{u1}, v{u1}
    v_cvt_pk_bf16_f32 v{u1}, v{u1}, v{u1}
    v_and_b32 v{u1}, 0xffff0000, v{u1}
    v_rcp_f32 v{u2}, v{u1}""")
    for k in range(16): a(f"    v_mul_f32 v{xf+k}, v{u2}, v{xf+k}")
    for q in range(8): a(f"    v_cvt_pk_bf16_f32 v{DB+q}, v{xf+2*q}, v{xf+2*q+1}")
def g1_issue_weights(a, LG, LU, mreg="s2"):
    a(f"""
    s_and_b32 s{sT0}, {mreg}, 7
    s_mul_i32 s{sT0}, s{sT0}, 28
    s_lshr_b32 s{sT1}, {mreg}, 3
    s_add_u32 s{sF0}, s{sT0}, s{sT1}
    s_lshl_b32 s{sF0}, s{sF0}, 4            ; f0
    v_lshrrev_b32 v6, 1, v{vLane}
    v_mul_u32_u24 v6, 7168, v6
    v_and_b32 v7, 1, v{vLane}
    v_lshl_add_u32 v6, v7, 4, v6
    s_mul_i32 s{sT2}, s{sW}, {128*7168}
    s_lshl_b32 s{sT0}, s{sF0}, 1
    s_add_u32 s{sT2}, s{sT2}, s{sT0}
    s_lshl_b32 s{sT3}, s{sW}, 12""")
    for (R, Lb) in ((R_G, LG), (R_U, LU)):
        for m in range(4):
            a(f"""
    s_add_u32 m0, s{sT3}, {Lb+1024*m}
    s_add_u32 s{sT0}, s{sT2}, {32*7168*m}
    buffer_load_dwordx4 v6, {srd(R)}, s{sT0} offen lds""")
def g1_xsel(a, LXS):
    a(f"""
    s_lshl_b32 s{sT0}, s{sIdx}, 11
    v_lshlrev_b32 v6, 5, v{vLane}
    buffer_load_dwordx4 v[8:11], v6, {srd(R_X)}, s{sT0} offen
    buffer_load_dwordx4 v[12:15], v6, {srd(R_X)}, s{sT0} offen offset:16
    s_waitcnt vmcnt(0)""")
    ln_natural(a, 8, 32, 16, 48, 52, 0, 0)
    a(f"""
    v_lshlrev_b32 v6, 5, v{vLane}
    ds_write_b128 v6, v[16:19] offset:{LXS}
    ds_write_b128 v6, v[20:23] offset:{LXS+16}""")
def g1_compute(a, LG, LU, LXS, RED):
    a(f"""
    v_lshlrev_b32 v6, 4, v{vG}
    s_lshl_b32 s{sT0}, s{sW}, 8
    s_add_u32 s{sT0}, s{sT0}, {LXS}
    v_add_u32 v6, s{sT0}, v6
    v_lshlrev_b32 v7, 8, v{vG}
    v_bfe_u32 v3, v{vLane}, 2, 2
    v_lshl_add_u32 v7, v3, 5, v7
    v_and_b32 v3, 3, v{vLane}
    v_lshl_add_u32 v7, v3, 3, v7
    s_lshl_b32 s{sT0}, s{sW}, 12
    v_add_u32 v7, s{sT0}, v7""")
    for m in range(4): a(f"    ds_read_b128 {v4(8+4*m)}, v6 offset:{64*m}")
    for mat,(Lb) in enumerate((LG, LU)):
        for m in range(4):
            b = 24+16*mat+4*m
            a(f"    ds_read_b64_tr_b16 {v2(b)}, v7 offset:{Lb+1024*m}")
            a(f"    ds_read_b64_tr_b16 {v2(b+2)}, v7 offset:{Lb+1024*m+128}")
    for mat in range(2):
        a(f"    s_waitcnt lgkmcnt({8-8*mat})")
        for m in range(4):
            c = "0" if m == 0 else v4(56+4*mat)
            a(f"    v_mfma_f32_16x16x32_bf16 {v4(56+4*mat)}, {v4(8+4*m)}, {v4(24+16*mat+4*m)}, {c}")
    a(f"""
    v_lshlrev_b32 v6, 2, v{vB}
    s_lshl_b32 s{sT0}, s{sW}, 7
    s_add_u32 s{sT0}, s{sT0}, {RED}
    v_add_u32 v6, s{sT0}, v6
    v_cmp_gt_u32 vcc, 16, v{vLane}
    s_and_saveexec_b64 s[90:91], vcc
    ds_write_b32 v6, v56
    ds_write_b32 v6, v60 offset:64
    s_mov_b64 exec, s[90:91]""")
def g1_finish(a, RED, HDST=64):
    a(f"    v_lshlrev_b32 v6, 2, v{vB}")
    for w in range(8):
        a(f"    ds_read_b32 v{8+w}, v6 offset:{RED+128*w}\n    ds_read_b32 v{16+w}, v6 offset:{RED+128*w+64}")
    a("    s_waitcnt lgkmcnt(0)")
    for w in range(1,8): a(f"    v_add_f32 v8, v8, v{8+w}\n    v_add_f32 v16, v16, v{16+w}")
    a(f"""
    v_cvt_pk_bf16_f32 v8, v8, v16
    v_and_b32 v16, 0xffff0000, v8
    v_lshlrev_b32 v8, 16, v8
    s_mov_b32 s{sT0}, 0xbfb8aa3b""")
    silu_pair(a, 8, 8, 9, 10, 11, sT0)
    a(f"""
    v_lshlrev_b32 v11, 16, v11
    v_mul_f32 v11, v11, v16
    v_cvt_pk_bf16_f32 v11, v11, v11
    v_lshlrev_b32 v{HDST}, 16, v11""")
def kernel_m1(name):
    a = Asm()
    a(f"""
    s_cmp_ge_u32 s2, 224
    s_cbranch_scc1 {name}_end""")
    load_args(a); lane_setup(a)
    a("    s_waitcnt lgkmcnt(0)")
    mk_srd(a, R_WS, S_WS, WS_SIZE); mk_srd(a, R_X, S_X, 4194304)
    mk_srd(a, R_G, S_G, 1024*7168); mk_srd(a, R_U, S_U, 1024*7168)
    LXS, RED, LG, LU = 0, 2048, 4096, 4096+32768
    a(f"    s_mov_b32 s{sT5}, {WS_CAND}")
    argmax_keys(a, 90, 16)
    g1_issue_weights(a, LG, LU)
    a(f"""
    s_cmp_lg_u32 s{sW}, 0
    s_cbranch_scc1 {name}_nox
    s_waitcnt vmcnt(8)""")
    argmax_finish(a, 94, 16); key_decode(a, 94)
    g1_xsel(a, LXS)
    a(f"{name}_nox:\n    s_waitcnt vmcnt(0) lgkmcnt(0)\n    s_barrier")
    g1_compute(a, LG, LU, LXS, RED)
    a(f"""
    s_waitcnt lgkmcnt(0)
    s_barrier
    s_cmp_lg_u32 s{sW}, 0
    s_cbranch_scc1 {name}_end""")
    g1_finish(a, RED)
    a(f"""
    v_lshlrev_b32 v6, 2, v{vB}
    s_lshl_b32 s{sT0}, s{sF0}, 2
    s_add_u32 s{sT0}, s{sT0}, {WS_H}
    v_cmp_gt_u32 vcc, 16, v{vLane}
    s_and_saveexec_b64 s[90:91], vcc
    buffer_store_dword v64, v6, {srd(R_WS)}, s{sT0} offen
{name}_end:
    s_endpgm""")
    return a, 128, LU+32768
WD2 = 8
def g2_issue_weights(a, mreg="s2"):
    a(f"""
    s_lshr_b32 s{sT0}, {mreg}, 4
    s_mul_i32 s{sT0}, s{sT0}, 224
    s_lshl_b32 s{sT1}, s{sW}, 5
    s_add_u32 s{sF0}, s{sT0}, s{sT1}
    s_lshl_b32 s{sT0}, s{sF0}, 11
    s_and_b32 s{sT1}, {mreg}, 15
    s_lshl_b32 s{sT1}, s{sT1}, 7
    s_add_u32 s{sT0}, s{sT0}, s{sT1}
    v_lshrrev_b32 v6, 3, v{vLane}
    v_lshlrev_b32 v6, 11, v6
    v_and_b32 v7, 7, v{vLane}
    v_lshl_add_u32 v6, v7, 4, v6""")
    for m in range(4):
        a(f"    s_add_u32 s{sT1}, s{sT0}, {8*2048*m}\n    buffer_load_dwordx4 {v4(WD2+4*m)}, v6, {srd(R_D)}, s{sT1} offen")
def g2_issue_h(a, H=24, fl=""):
    a(f"""
    v_lshrrev_b32 v7, 3, v{vLane}
    v_lshlrev_b32 v7, 2, v7
    s_lshl_b32 s{sT0}, s{sF0}, 2
    s_add_u32 s{sT0}, s{sT0}, {WS_H}""")
    for m in range(4): a(f"    buffer_load_dword v{H+m}, v7, {srd(R_WS)}, s{sT0} offen offset:{32*m} {fl}")
def g2_compute(a, RED, H=24):
    ACC, T = 32, 40
    for m in range(4):
        for d in range(4):
            a(f"    v_lshlrev_b32 v{T}, 16, v{WD2+4*m+d}\n    v_and_b32 v{T+1}, 0xffff0000, v{WD2+4*m+d}")
            if m == 0:
                a(f"    v_mul_f32 v{ACC+2*d}, v{H}, v{T}\n    v_mul_f32 v{ACC+2*d+1}, v{H}, v{T+1}")
            else:
                a(f"    v_fmac_f32 v{ACC+2*d}, v{H+m}, v{T}\n    v_fmac_f32 v{ACC+2*d+1}, v{H+m}, v{T+1}")
    for k in range(4): a(f"    v_permlane32_swap_b32 v{ACC+k}, v{ACC+k+4}")
    for k in range(4): a(f"    v_add_f32 v{ACC+k}, v{ACC+k}, v{ACC+k+4}")
    for k in range(2): a(f"    v_permlane16_swap_b32 v{ACC+k}, v{ACC+k+2}")
    for k in range(2): a(f"    v_add_f32 v{ACC+k}, v{ACC+k}, v{ACC+k+2}")
    for k in range(2): a(f"    v_add_f32_dpp v{ACC+k}, v{ACC+k}, v{ACC+k} row_ror:8 row_mask:0xf bank_mask:0xf")
    a(f"""
    v_and_b32 v6, 7, v{vLane}
    v_lshlrev_b32 v6, 5, v6
    v_lshl_add_u32 v6, v{vG}, 3, v6
    s_lshl_b32 s{sT0}, s{sW}, 8
    s_add_u32 s{sT0}, s{sT0}, {RED}
    v_add_u32 v6, s{sT0}, v6
    ds_write_b64 v6, v[{ACC}:{ACC+1}]""")
def g2_finish(a, RED, mreg="s2", fl=""):
    a(f"    v_lshlrev_b32 v6, 2, v{vLane}")
    for w in range(7): a(f"    ds_read_b32 v{8+w}, v6 offset:{RED+256*w}")
    a("    s_waitcnt lgkmcnt(0)")
    for w in range(1,7): a(f"    v_add_f32 v8, v8, v{8+w}")
    a(f"""
    s_lshr_b32 s{sT0}, {mreg}, 4
    s_lshl_b32 s{sT0}, s{sT0}, 12
    s_and_b32 s{sT1}, {mreg}, 15
    s_lshl_b32 s{sT1}, s{sT1}, 8
    s_add_u32 s{sT0}, s{sT0}, s{sT1}
    s_add_u32 s{sT0}, s{sT0}, {WS_Y}
    buffer_store_dword v8, v6, {srd(R_WS)}, s{sT0} offen {fl}""")
def kernel_m2(name):
    a = Asm()
    a(f"""
    s_cmp_ge_u32 s2, 256
    s_cbranch_scc1 {name}_end""")
    load_args(a); lane_setup(a)
    a("    s_waitcnt lgkmcnt(0)")
    mk_srd(a, R_WS, S_WS, WS_SIZE); mk_srd(a, R_D, S_D, 3584*2048)
    RED = 0
    a(f"    s_cmp_eq_u32 s{sW}, 7\n    s_cbranch_scc1 {name}_skip")
    g2_issue_weights(a); g2_issue_h(a)
    a("    s_waitcnt vmcnt(0)")
    g2_compute(a, RED)
    a(f"{name}_skip:\n    s_waitcnt lgkmcnt(0)\n    s_barrier\n    s_cmp_lg_u32 s{sW}, 0\n    s_cbranch_scc1 {name}_end")
    g2_finish(a, RED)
    a(f"{name}_end:\n    s_endpgm")
    return a, 64, 2048
```

```python
from common import *
sW   = 68
sRow = 69
sT0,sT1,sT2,sT3,sT4,sT5 = 70,71,72,73,74,75
sA0, sA1, sAN = 76,77,78
sRowI = 79
sKey = 80
vLane, vL16, vXo, vG, vB = 1,2,3,4,5
def lane_setup(a):
    a(f"""
    v_and_b32 v{vLane}, 63, v0
    v_lshrrev_b32 v6, 6, v0
    v_lshlrev_b32 v{vL16}, 4, v{vLane}
    v_readfirstlane_b32 s{sW}, v6
    v_lshrrev_b32 v{vG}, 4, v{vLane}
    v_and_b32 v{vB}, 15, v{vLane}""")
def p1_issue_loads(a):
    a(f"""
    s_lshl_b32 s{sRowI}, s{sW}, 8
    s_add_u32 s{sRowI}, s{sRowI}, s2
    s_lshl_b32 s{sRow}, s{sRowI}, 11
    v_lshlrev_b32 v{vXo}, 9, v{vG}
    v_lshl_add_u32 v{vXo}, v{vB}, 2, v{vXo}""")
    for q in range(8):
        a(f"    buffer_load_dword v{8+q}, v{vXo}, {srd(R_X)}, s{sRow} offen offset:{64*q}")
    for q in range(8):
        a(f"    buffer_load_dword v{16+q}, v{vXo}, {srd(R_BW)}, 0 offen offset:{64*q}")
def dma_tables(a, first, count, lds_base):
    n = (count + 7)//8
    for m in range(n):
        lab = f"Ldma_{first}_{m}_{len(a.lines)}"
        full = (m+1)*8 <= count
        a(f"    s_add_u32 s{sT0}, s{sW}, {8*m}")
        if not full:
            a(f"    s_cmp_ge_u32 s{sT0}, {count}\n    s_cbranch_scc1 {lab}")
        a(f"""
    s_lshl_b32 s{sT0}, s{sT0}, 10
    s_add_u32 m0, s{sT0}, {lds_base}
    s_add_u32 s{sT0}, s{sT0}, {first*1024}
    buffer_load_dwordx4 v{vL16}, {srd(R_T)}, s{sT0} offen lds""")
        if not full: a(f"{lab}:")
def r8_matrix(a, dst, inverse, tmp):
    t0,t1,t2,t3,t4,t5 = range(tmp, tmp+6)
    a(f"""
    v_lshrrev_b32 v{t0}, 1, v{vB}          ; o = (lane&15)>>1
    v_and_b32 v{t1}, 1, v{vB}              ; oc
    v_cmp_eq_u32 vcc, 1, v{t1}""")
    for e in range(2):
        if not inverse:
            a(f"""
    v_lshlrev_b32 v{t2}, 9, v{vG}
    v_add_u32 v{t2}, s2, v{t2}
    v_add_u32 v{t2}, {256*e}, v{t2}
    v_mul_lo_u32 v{t2}, v{t2}, v{t0}""")
        else:
            a(f"""
    v_lshlrev_b32 v{t2}, 8, v{t0}
    v_add_u32 v{t2}, s2, v{t2}
    v_lshlrev_b32 v{t3}, 1, v{vG}
    v_add_u32 v{t3}, {e}, v{t3}
    v_mul_lo_u32 v{t2}, v{t2}, v{t3}""")
        a(f"""
    v_and_b32 v{t2}, 2047, v{t2}
    v_cvt_f32_u32 v{t2}, v{t2}
    v_mul_f32 v{t2}, 0x3a000000, v{t2}      ; /2048 -> revolutions
    v_cos_f32 v{t3}, v{t2}
    v_sin_f32 v{t4}, v{t2}""")
        if not inverse:
            a(f"""
    v_sub_f32 v{t5}, 0, v{t4}
    v_cndmask_b32 v{t5}, v{t3}, v{t5}, vcc
    v_cndmask_b32 v{t3}, v{t4}, v{t3}, vcc
    v_cvt_pk_f16_f32 v{dst+e}, v{t5}, v{t3}""")
        else:
            a(f"""
    v_sub_f32 v{t5}, 0, v{t4}
    v_cndmask_b32 v{t5}, v{t5}, v{t3}, vcc
    v_cndmask_b32 v{t3}, v{t3}, v{t4}, vcc
    v_cvt_pk_bf16_f32 v{dst+e}, v{t3}, v{t5}""")
def ln_stats(a, X, xf, DB, acc, sMb, sRs, tmpv):
    a0,a1,a2,a3 = acc,acc+1,acc+2,acc+3
    u0,u1,u2 = tmpv,tmpv+1,tmpv+2
    a(f"    s_mov_b32 s{sT1}, 0x3f803f80\n    v_mov_b32 v{a0}, 0\n    v_mov_b32 v{a1}, 0")
    for q in range(8):
        a(f"    v_dot2c_f32_bf16 v{a0 + (q&1)}, s{sT1}, v{X+q}")
    a(f"    v_add_f32 v{a0}, v{a0}, v{a1}")
    unp=[]
    for q in range(8):
        unp.append(f"    v_lshlrev_b32 v{xf+q}, 16, v{X+q}")
        unp.append(f"    v_and_b32 v{xf+8+q}, 0xffff0000, v{X+q}")
    interleave(a, dpp_sum_steps(a0), unp, 2)
    a(f"""
    v_readlane_b32 s{sT2}, v{a0}, 63
    v_mov_b32 v{u0}, 0x3a800000            ; 1/1024
    v_mul_f32 v{u0}, s{sT2}, v{u0}          ; mean
    v_cvt_pk_bf16_f32 v{u1}, v{u0}, v{u0}
    v_and_b32 v{u1}, 0xffff0000, v{u1}      ; m_bf
    v_sub_f32 v{u0}, v{u0}, v{u1}""")
    for k in range(16):
        a(f"    v_sub_f32 v{xf+k}, v{xf+k}, v{u1}")
    a(f"    v_readfirstlane_b32 s{sMb}, v{u1}")
    for k in range(4): a(f"    v_mul_f32 v{acc+k}, v{xf+k}, v{xf+k}")
    for k in range(4,16): a(f"    v_fmac_f32 v{acc+(k&3)}, v{xf+k}, v{xf+k}")
    a(f"""
    v_add_f32 v{a0}, v{a0}, v{a1}
    v_add_f32 v{a2}, v{a2}, v{a3}
    v_add_f32 v{a0}, v{a0}, v{a2}""")
    fill=[]
    for t in range(2):
        for p in range(4):
            fill.append(f"    v_cvt_pk_bf16_f32 v{DB+4*t+p}, v{xf+8*t+2*p}, v{xf+8*t+2*p+1}")
    for t in range(2):
        for p in range(4):
            fill.append(f"    v_lshlrev_b32 v{xf+8*t+2*p}, 16, v{DB+4*t+p}")
            fill.append(f"    v_and_b32 v{xf+8*t+2*p+1}, 0xffff0000, v{DB+4*t+p}")
    interleave(a, dpp_sum_steps(a0), fill, 3)
    a(f"""
    v_readlane_b32 s{sT2}, v{a0}, 63
    v_mov_b32 v{u1}, 0x3a800000
    v_mul_f32 v{u1}, s{sT2}, v{u1}          ; E[(x-m_bf)^2]
    v_fma_f32 v{u1}, -v{u0}, v{u0}, v{u1}   ; var
    v_max_f32 v{u1}, 0, v{u1}
    v_cvt_pk_bf16_f32 v{u1}, v{u1}, v{u1}
    v_and_b32 v{u1}, 0xffff0000, v{u1}
    v_add_f32 v{u1}, 0x3727c5ac, v{u1}      ; + 1e-5
    v_cvt_pk_bf16_f32 v{u1}, v{u1}, v{u1}
    v_and_b32 v{u1}, 0xffff0000, v{u1}
    v_sqrt_f32 v{u1}, v{u1}
    v_cvt_pk_bf16_f32 v{u1}, v{u1}, v{u1}
    v_and_b32 v{u1}, 0xffff0000, v{u1}
    v_rcp_f32 v{u2}, v{u1}
    v_readfirstlane_b32 s{sRs}, v{u2}""")
def p1_compute(a, TAB, LX, KEYS):
    X, WRr, WR, xf, acc, DB, XN, T1A, D = 8, 16, 24, 32, 48, 52, 60, 68, 84
    R8M = 116
    sMb, sRs = 81, 82
    r8_matrix(a, R8M, False, 118)
    a(f"    s_mov_b32 s{sT3}, 0x05040100\n    s_mov_b32 s{sT4}, 0x07060302")
    a("    s_waitcnt vmcnt(0)")
    a("    s_barrier")
    for ch in range(2):
        for oc in range(2):
            a(f"    ds_read_b128 {v4(T1A+8*ch+4*oc)}, v{vL16} offset:{TAB+BLK[('1A',ch,oc)]*1024}")
    for p in range(4):
        a(f"    v_perm_b32 v{WR+p}, v{WRr+2*p+1}, v{WRr+2*p}, s{sT3}")
        a(f"    v_perm_b32 v{WR+4+p}, v{WRr+2*p+1}, v{WRr+2*p}, s{sT4}")
    ln_stats(a, X, xf, DB, acc, sMb, sRs, 56+0 if False else 124)
    for k in range(16): a(f"    v_mul_f32 v{xf+k}, s{sRs}, v{xf+k}")
    for t in range(2):
        for p in range(4):
            a(f"    v_cvt_pk_bf16_f32 v{XN+4*t+p}, v{xf+8*t+2*p}, v{xf+8*t+2*p+1}")
    for ch in range(2):
        for t in range(2):
            a(f"    ds_read_b128 {v4(8+8*ch+4*t)}, v{vL16} offset:{TAB+BLK[('1W',ch,t)]*1024}")
    a("    s_waitcnt lgkmcnt(4)")
    for ch in range(2):
        for t in range(2):
            for oc in range(2):
                a(f"    v_mfma_f32_16x16x32_bf16 {v4(D+16*ch+8*t+4*oc)}, {v4(XN+4*t)}, {v4(T1A+8*ch+4*oc)}, 0")
    for sg in range(2):
        for rho in range(2):
            a(f"    ds_read_b128 {v4(32+8*sg+4*rho)}, v{vL16} offset:{TAB+BLK[('1B',sg,rho)]*1024}")
    a(f"    s_mov_b32 s{sT1}, 0x3f803f80\n    s_mov_b32 s{sT5}, 0xbf80bf80\n    v_mov_b32 v{acc}, 0\n    v_mov_b32 v{acc+1}, 0")
    for t in range(2):
        for p in range(4):
            a(f"    v_dot2c_f32_bf16 v{acc}, v{WR+4*t+p}, v{XN+4*t+p}")
            a(f"    v_dot2c_f32_bf16 v{acc+1}, s{sT1 if t==0 else sT5}, v{XN+4*t+p}")
    for s0,s1 in zip(dpp_sum_steps(acc), dpp_sum_steps(acc+1)):
        a(s0); a(s1)
    a(f"""
    v_readlane_b32 s{sT1}, v{acc}, 63
    v_readlane_b32 s{sT2}, v{acc+1}, 63
    v_cvt_pk_bf16_f32 v{acc+2}, s{sT1}, s{sT1}
    v_mul_f32 v{acc+3}, s{sT2}, 0.25""".replace("v_mul_f32 v%d, s%d, 0.25"%(acc+3,sT2), "v_mov_b32 v%d, 0x3e800000\n    v_mul_f32 v%d, s%d, v%d"%(acc+3,acc+3,sT2,acc+3)))
    a(f"""
    v_readfirstlane_b32 s{sT1}, v{acc+2}
    v_cvt_pk_f16_f32 v{acc+3}, v{acc+3}, 0
    s_and_b32 s{sT1}, s{sT1}, 0xffff
    s_or_b32 s{sT2}, s{sT1}, 0x8000
    s_xor_b32 s{sT5}, s{sT1}, 0xffff
    s_bitcmp1_b32 s{sT1}, 15
    s_cselect_b32 s{sT1}, s{sT5}, s{sT2}
    s_lshl_b32 s{sT1}, s{sT1}, 16
    s_sub_u32 s{sT2}, 2047, s{sRowI}
    s_or_b32 s{sKey}, s{sT1}, s{sT2}""")
    a("    s_waitcnt lgkmcnt(0)")
    Z = 68
    for ch in range(2):
        for t in range(2):
            for r in range(4):
                z = Z+8*ch+4*t+r; tw = 8+8*ch+4*t+r
                a(f"    v_cvt_pk_f16_f32 v{z}, v{D+16*ch+8*t+r}, v{D+16*ch+8*t+4+r}")
        for t in range(2):
            for r in range(4):
                z = Z+8*ch+4*t+r; tw = 8+8*ch+4*t+r; tmp = D+16*ch+8*t+r
                a(f"    v_pk_mul_f16 v{tmp}, v{z}, v{tw} op_sel:[0,0] op_sel_hi:[0,1]")
        for t in range(2):
            for r in range(4):
                z = Z+8*ch+4*t+r; tw = 8+8*ch+4*t+r; tmp = D+16*ch+8*t+r
                a(f"    v_pk_fma_f16 v{z}, v{z}, v{tw}, v{tmp} op_sel:[1,1,0] op_sel_hi:[1,0,1] neg_lo:[0,1,0]")
        D2 = 84 + 8*ch if ch == 0 else 92
        for sg in range(2):
            for rho in range(2):
                c = "0" if sg == 0 else v4(D2+4*rho)
                a(f"    v_mfma_f32_16x16x32_f16 {v4(D2+4*rho)}, {v4(32+8*sg+4*rho)}, {v4(Z+8*ch+4*sg)}, {c}")
    vWA, vRA = 118, 119
    a(f"""
    v_mul_u32_u24 v{vWA}, 40, v{vB}
    v_mul_u32_u24 v{vRA}, 2560, v{vG}
    v_add_u32 v{vWA}, v{vWA}, v{vRA}
    s_lshl_b32 s{sT1}, s{sW}, 2
    s_add_u32 s{sT1}, s{sT1}, {LX}
    v_add_u32 v{vWA}, s{sT1}, v{vWA}
    v_mul_u32_u24 v{vRA}, 160, v{vB}
    v_lshl_add_u32 v{vRA}, v{vG}, 3, v{vRA}
    s_mul_i32 s{sT2}, s{sW}, 2560
    s_add_u32 s{sT2}, s{sT2}, {LX}
    v_add_u32 v{vRA}, s{sT2}, v{vRA}""")
    PK = 60
    for ch in range(2):
        for rho in range(2):
            d2 = 84+8*ch+4*rho
            for d0 in range(2):
                pkreg = PK+4*ch+2*rho+d0
                a(f"    v_cvt_pk_f16_f32 v{pkreg}, v{d2+2*d0}, v{d2+2*d0+1}")
                a(f"    ds_write_b32 v{vWA}, v{pkreg} offset:{640*ch+10240*rho+1280*d0}")
    a(f"""
    s_mov_b64 exec, 1
    v_mov_b32 v120, s{sT1}
    ds_write_b32 v120, v{acc+3} offset:{512*40}
    s_lshl_b32 s{sT2}, s{sW}, 2
    s_add_u32 s{sT2}, s{sT2}, {KEYS}
    v_mov_b32 v121, s{sT2}
    v_mov_b32 v122, s{sKey}
    ds_write_b32 v121, v122
    s_lshl_b32 s{sT2}, s{sRowI}, 3
    s_add_u32 s{sT2}, s{sT2}, {WS_ST}
    v_mov_b32 v121, s{sT2}
    v_mov_b32 v122, s{sMb}
    v_mov_b32 v123, s{sRs}
    buffer_store_dwordx2 v[122:123], v121, {srd(R_WS)}, 0 offen
    s_mov_b64 exec, -1
    s_waitcnt lgkmcnt(0)
    s_barrier""")
    for tau in range(4):
        a(f"    ds_read_b64 {v2(8+2*tau)}, v{vRA} offset:{40*tau}")
    vA, vN = 120, 121
    a(f"""
    s_mov_b32 s{sT1}, {2*A_JP}
    v_mul_lo_u32 v{vA}, v{vG}, s{sT1}
    v_lshrrev_b32 v122, 3, v{vB}
    v_lshlrev_b32 v122, 15, v122           ; (col>>3)*A_KP
    v_and_b32 v123, 7, v{vB}
    v_lshl_add_u32 v122, v123, 4, v122
    v_add_u32 v{vA}, v{vA}, v122
    s_lshl_b32 s{sA0}, s{sW}, 16           ; 2w*A_KP
    s_lshl_b32 s{sT1}, s2, 7
    s_add_u32 s{sA0}, s{sA0}, s{sT1}
    s_add_u32 s{sA0}, s{sA0}, {WS_A}
    s_add_u32 s{sA1}, s{sA0}, {A_JP}
    s_add_u32 s{sAN}, s{sT1}, {WS_A+16*A_KP}""")
    for tau in range(4):
        a(f"    s_waitcnt lgkmcnt({3-tau})")
        a(f"    v_mfma_f32_16x16x16_f16 {v4(16+4*tau)}, {v2(R8M)}, {v2(8+2*tau)}, 0")
    for e in range(2):
        for tau in range(4):
            a(f"    v_cvt_pk_f16_f32 v{32+4*e+tau}, v{16+4*tau+2*e}, v{16+4*tau+2*e+1}")
    return vA
def p1_store(a, vA, fl=""):
    a(f"    buffer_store_dwordx4 {v4(32)}, v{vA}, {srd(R_WS)}, s{sA0} offen {fl}")
    a(f"    buffer_store_dwordx4 {v4(36)}, v{vA}, {srd(R_WS)}, s{sA1} offen {fl}")
def p1_nyq_and_key(a, LX, KEYS, R8M=116, fl=""):
    lab = f"Lnyq_{len(a.lines)}"
    a(f"""
    s_cmp_lg_u32 s{sW}, 7
    s_cbranch_scc1 {lab}
    v_lshlrev_b32 v40, 3, v{vG}
    ds_read_b64 v[8:9], v40 offset:{LX+512*40}
    v_mov_b32 v41, {KEYS}
    ds_read_b128 v[44:47], v41
    ds_read_b128 v[48:51], v41 offset:16
    s_waitcnt lgkmcnt(2)
    v_mfma_f32_16x16x16_f16 v[16:19], {v2(R8M)}, v[8:9], 0
    v_and_b32 v42, 8, v{vB}
    v_cmp_ne_u32 vcc, 0, v42
    v_cndmask_b32 v16, v16, v18, vcc
    v_cndmask_b32 v17, v17, v19, vcc
    v_cvt_pk_f16_f32 v20, v16, v17
    v_and_b32 v42, 7, v{vLane}
    v_cmp_eq_u32 vcc, 0, v42
    v_cndmask_b32 v20, 0, v20, vcc
    v_mov_b32 v21, 0
    v_mov_b32 v22, 0
    v_mov_b32 v23, 0
    v_lshrrev_b32 v43, 3, v{vLane}
    s_mov_b32 s{sT1}, {A_JP}
    v_mul_lo_u32 v43, v43, s{sT1}
    v_lshl_add_u32 v43, v42, 4, v43
    buffer_store_dwordx4 v[20:23], v43, {srd(R_WS)}, s{sAN} offen {fl}
    s_waitcnt lgkmcnt(0)
    v_max3_u32 v44, v44, v45, v46
    v_max3_u32 v47, v47, v48, v49
    v_max3_u32 v44, v44, v50, v51
    v_max_u32 v44, v44, v47
    s_lshl_b32 s{sT1}, s2, 2
    s_add_u32 s{sT1}, s{sT1}, {WS_CAND}
    v_mov_b32 v45, s{sT1}
    s_mov_b64 exec, 1
    buffer_store_dword v44, v45, {srd(R_WS)}, 0 offen {fl}
    s_mov_b64 exec, -1
{lab}:""")
def kernel_p1(name):
    a = Asm()
    a(f"""
    s_cmp_ge_u32 s2, 256
    s_cbranch_scc1 {name}_end""")
    load_args(a); lane_setup(a)
    mk_table_srd(a, name)
    a("    s_waitcnt lgkmcnt(0)")
    mk_srd(a, R_X, S_X, 4194304); mk_srd(a, R_BW, S_BW, 2048); mk_srd(a, R_WS, S_WS, WS_SIZE)
    p1_issue_loads(a)
    TAB, LX, KEYS = 0, 12288, 12288+20544
    dma_tables(a, 0, 12, TAB)
    vA = p1_compute(a, TAB, LX, KEYS)
    p1_store(a, vA)
    p1_nyq_and_key(a, LX, KEYS)
    a(f"{name}_end:\n    s_endpgm")
    return a, 128, 12288+20544+64
```

```python
from common import *
from p1 import sW,sT0,sT1,sT2,sT3,sT4,sT5,vLane,vL16,vG,vB,lane_setup,dma_tables
sJP, sKB, sIn, sWo, sSh, sB0, sB1 = 83,84,85,86,87,88,89
def p2_ids(a, idreg="s2"):
    a(f"""
    s_and_b32 s{sJP}, {idreg}, 7
    s_lshr_b32 s{sKB}, {idreg}, 3""")
def p2_issue_w(a, W0=16, W1=24):
    a(f"""
    s_mul_i32 s{sWo}, s{sJP}, 1026
    s_lshl_b32 s{sT0}, s{sKB}, 5
    s_add_u32 s{sWo}, s{sWo}, s{sT0}
    s_and_b32 s{sT0}, s{sJP}, 1
    s_lshl_b32 s{sSh}, s{sT0}, 4
    s_lshl_b32 s{sT0}, s{sT0}, 1
    s_sub_u32 s{sWo}, s{sWo}, s{sT0}
    v_lshrrev_b32 v6, 1, v0
    v_mul_u32_u24 v6, 8208, v6
    v_and_b32 v7, 1, v0
    v_lshl_add_u32 v6, v7, 4, v6
    buffer_load_dwordx4 {v4(W0)}, v6, {srd(R_WR)}, s{sWo} offen
    buffer_load_dword v{W0+4}, v6, {srd(R_WR)}, s{sWo} offen offset:16
    buffer_load_dwordx4 {v4(W1)}, v6, {srd(R_WI)}, s{sWo} offen
    buffer_load_dword v{W1+4}, v6, {srd(R_WI)}, s{sWo} offen offset:16""")
def p2_w_to_lds(a, LW, W0=16, W1=24):
    for W in (W0, W1):
        for m in range(4):
            a(f"    v_alignbit_b32 v{W+m}, v{W+m+1}, v{W+m}, s{sSh}")
    a(f"""
    v_lshrrev_b32 v6, 1, v0
    v_mul_u32_u24 v6, 80, v6
    v_and_b32 v7, 1, v0
    v_lshl_add_u32 v6, v7, 4, v6
    ds_write_b128 v6, {v4(W0)} offset:{LW}
    ds_write_b128 v6, {v4(W1)} offset:{LW+32}""")
def p2_issue_in(a, IN=8, fl=""):
    a(f"""
    s_mul_i32 s{sIn}, s{sJP}, {A_JP}
    s_lshr_b32 s{sT0}, s{sKB}, 1
    s_lshl_b32 s{sT0}, s{sT0}, 15
    s_add_u32 s{sIn}, s{sIn}, s{sT0}
    s_and_b32 s{sT0}, s{sKB}, 1
    s_lshl_b32 s{sT0}, s{sT0}, 6
    s_add_u32 s{sIn}, s{sIn}, s{sT0}
    s_lshl_b32 s{sT0}, s{sW}, 12
    s_add_u32 s{sIn}, s{sIn}, s{sT0}
    s_add_u32 s{sIn}, s{sIn}, {WS_A}
    v_lshrrev_b32 v6, 2, v{vLane}
    v_lshlrev_b32 v6, 7, v6
    v_and_b32 v7, 3, v{vLane}
    v_lshl_add_u32 v3, v7, 4, v6
    buffer_load_dwordx4 {v4(IN)}, v3, {srd(R_WS)}, s{sIn} offen {fl}
    buffer_load_dwordx4 {v4(IN+4)}, v3, {srd(R_WS)}, s{sIn} offen offset:2048 {fl}""")
def p2_in_to_lds(a, LI, IN=8):
    a(f"""
    v_lshrrev_b32 v6, 2, v{vLane}
    v_lshlrev_b32 v6, 4, v6
    v_and_b32 v7, 3, v{vLane}
    v_mul_u32_u24 v7, 4128, v7
    v_add_u32 v6, v6, v7
    s_lshl_b32 s{sT0}, s{sW}, 9
    s_add_u32 s{sT0}, s{sT0}, {LI}
    v_add_u32 v6, s{sT0}, v6
    ds_write_b128 v6, {v4(IN)}
    ds_write_b128 v6, {v4(IN+4)} offset:256""")
T2A,T2W,T2B,T2C,T2V,T2D = 32,40,44,52,60,64
def p2_read_tables(a, TAB, first):
    o = lambda k: TAB + (BLK[k]-first)*1024
    for oc in range(2): a(f"    ds_read_b128 {v4(T2A+4*oc)}, v{vL16} offset:{o(('2A',oc))}")
    a(f"    ds_read_b128 {v4(T2W)}, v{vL16} offset:{o(('2W',))}")
    for r in range(2): a(f"    ds_read_b128 {v4(T2B+4*r)}, v{vL16} offset:{o(('2B',r))}")
    for oc in range(2): a(f"    ds_read_b128 {v4(T2C+4*oc)}, v{vL16} offset:{o(('2C',oc))}")
    a(f"    ds_read_b128 {v4(T2V)}, v{vL16} offset:{o(('2V',))}")
    for r in range(2): a(f"    ds_read_b128 {v4(T2D+4*r)}, v{vL16} offset:{o(('2D',r))}")
def p2_compute(a, LI, LW, LO):
    U, D, Z, WD = 72, 80, 96, 104
    a(f"""
    v_lshlrev_b32 v6, 10, v{vG}
    v_lshl_add_u32 v6, v{vB}, 4, v6
    s_lshr_b32 s{sT0}, s{sW}, 1
    s_mul_i32 s{sT0}, s{sT0}, 4128
    s_and_b32 s{sT1}, s{sW}, 1
    s_lshl_b32 s{sT1}, s{sT1}, 3
    s_add_u32 s{sT0}, s{sT0}, s{sT1}
    s_add_u32 s{sT0}, s{sT0}, {LI}
    v_add_u32 v6, s{sT0}, v6""")
    for t in range(4): a(f"    ds_read_b64 {v2(U+2*t)}, v6 offset:{256*t}")
    a(f"""
    v_mul_u32_u24 v7, 80, v{vB}
    v_mul_u32_u24 v3, 5120, v{vG}
    v_add_u32 v7, v7, v3
    s_lshl_b32 s{sT0}, s{sW}, 2
    s_add_u32 s{sT1}, s{sT0}, {LW}
    v_add_u32 v3, s{sT1}, v7
    s_lshl_b32 s{sT0}, s{sW}, 3
    s_add_u32 s{sT0}, s{sT0}, {LO}
    v_add_u32 v7, s{sT0}, v7""")
    for t in range(4):
        a(f"    ds_read_b32 v{WD+2*t}, v3 offset:{1280*t}")
        a(f"    ds_read_b32 v{WD+2*t+1}, v3 offset:{1280*t+32}")
    a("    s_waitcnt lgkmcnt(8)")
    a(f"""
    v_swap_b32 v{U+1}, v{U+2}
    v_swap_b32 v{U+3}, v{U+6}
    v_swap_b32 v{U+2}, v{U+4}
    v_swap_b32 v{U+6}, v{U+5}""")
    for u in range(2):
        for oc in range(2):
            a(f"    v_mfma_f32_16x16x32_f16 {v4(D+8*u+4*oc)}, {v4(U+4*u)}, {v4(T2A+4*oc)}, 0")
    for u in range(2):
        for r in range(4): a(f"    v_cvt_pk_f16_f32 v{Z+4*u+r}, v{D+8*u+r}, v{D+8*u+4+r}")
        for r in range(4): a(f"    v_pk_mul_f16 v{D+8*u+r}, v{Z+4*u+r}, v{T2W+r} op_sel:[0,0] op_sel_hi:[0,1]")
        for r in range(4): a(f"    v_pk_fma_f16 v{Z+4*u+r}, v{Z+4*u+r}, v{T2W+r}, v{D+8*u+r} op_sel:[1,1,0] op_sel_hi:[1,0,1] neg_lo:[0,1,0]")
        for rho in range(2):
            a(f"    v_mfma_f32_16x16x32_f16 {v4(D+8*u+4*rho)}, {v4(T2B+4*rho)}, {v4(Z+4*u)}, 0")
    a("    s_waitcnt lgkmcnt(0)")
    WF = 112
    for t in range(4):
        a(f"    v_lshlrev_b32 v{WF+4*t+0}, 16, v{WD+2*t}")
        a(f"    v_lshlrev_b32 v{WF+4*t+1}, 16, v{WD+2*t+1}")
        a(f"    v_and_b32 v{WF+4*t+2}, 0xffff0000, v{WD+2*t}")
        a(f"    v_and_b32 v{WF+4*t+3}, 0xffff0000, v{WD+2*t+1}")
    Y = 96; TM = 104; D3 = 8
    for u in range(2):
        for rho in range(2):
            for d0 in range(2):
                t = 2*rho+d0; xr = D+8*u+4*rho+2*d0; xi = xr+1; wr = WF+4*t+2*u; wi = wr+1
                a(f"    v_mul_f32 v{TM+2*t}, v{xr}, v{wr}")
                a(f"    v_mul_f32 v{TM+2*t+1}, v{xr}, v{wi}")
        for rho in range(2):
            for d0 in range(2):
                t = 2*rho+d0; xr = D+8*u+4*rho+2*d0; xi = xr+1; wr = WF+4*t+2*u; wi = wr+1
                a(f"    v_fma_f32 v{TM+2*t}, -v{xi}, v{wi}, v{TM+2*t}")
                a(f"    v_fma_f32 v{TM+2*t+1}, v{xi}, v{wr}, v{TM+2*t+1}")
        for t in range(4): a(f"    v_cvt_pk_bf16_f32 v{Y+4*u+t}, v{TM+2*t}, v{TM+2*t+1}")
        for oc in range(2):
            a(f"    v_mfma_f32_16x16x32_bf16 {v4(D3+8*u+4*oc)}, {v4(Y+4*u)}, {v4(T2C+4*oc)}, 0")
    Z2 = 72
    for u in range(2):
        for r in range(4):
            gr = D3+8*u+r; gi = gr+4
            a(f"    v_fma_mix_f32 v{TM+2*r}, v{gr}, v{T2V+r}, 0 op_sel:[0,0,0] op_sel_hi:[0,1,0]")
            a(f"    v_fma_mix_f32 v{TM+2*r+1}, v{gr}, v{T2V+r}, 0 op_sel:[0,1,0] op_sel_hi:[0,1,0]")
        for r in range(4):
            gr = D3+8*u+r; gi = gr+4
            a(f"    v_fma_mix_f32 v{TM+2*r}, -v{gi}, v{T2V+r}, v{TM+2*r} op_sel:[0,1,0] op_sel_hi:[0,1,0]")
            a(f"    v_fma_mix_f32 v{TM+2*r+1}, v{gi}, v{T2V+r}, v{TM+2*r+1} op_sel:[0,0,0] op_sel_hi:[0,1,0]")
        for r in range(4): a(f"    v_cvt_pk_bf16_f32 v{Z2+4*u+r}, v{TM+2*r}, v{TM+2*r+1}")
        for rho in range(2):
            a(f"    v_mfma_f32_16x16x32_bf16 {v4(D+8*u+4*rho)}, {v4(T2D+4*rho)}, {v4(Z2+4*u)}, 0")
    V = 96
    for u in range(2):
        for rho in range(2):
            for f0 in range(2):
                t = 2*rho+f0
                a(f"    v_cvt_pk_bf16_f32 v{V+2*t+u}, v{D+8*u+4*rho+2*f0}, v{D+8*u+4*rho+2*f0+1}")
    for t in range(4): a(f"    ds_write_b64 v7, {v2(V+2*t)} offset:{1280*t}")
def p2_out(a, LO, fl=""):
    a(f"""
    v_lshrrev_b32 v6, 2, v{vLane}
    v_mul_u32_u24 v6, 80, v6
    v_and_b32 v7, 3, v{vLane}
    v_lshl_add_u32 v6, v7, 4, v6
    s_mul_i32 s{sT0}, s{sW}, 2560
    s_add_u32 s{sT0}, s{sT0}, {LO}
    v_add_u32 v6, s{sT0}, v6
    v_lshrrev_b32 v3, 3, v{vLane}
    s_mov_b32 s{sT1}, {B_IP}
    v_mul_lo_u32 v3, v3, s{sT1}
    v_and_b32 v7, 7, v{vLane}
    v_lshl_add_u32 v3, v7, 4, v3
    s_mul_i32 s{sB0}, s{sJP}, 33
    s_add_u32 s{sB0}, s{sB0}, s{sKB}
    s_lshl_b32 s{sB0}, s{sB0}, 7
    s_mul_i32 s{sT0}, s{sW}, {16*B_IP}
    s_add_u32 s{sB0}, s{sB0}, s{sT0}
    s_add_u32 s{sB0}, s{sB0}, {WS_B}
    s_add_u32 s{sB1}, s{sB0}, {8*B_IP}
    s_waitcnt lgkmcnt(0)
    s_barrier
    ds_read_b128 v[8:11], v6
    ds_read_b128 v[12:15], v6 offset:1280
    s_waitcnt lgkmcnt(1)
    buffer_store_dwordx4 v[8:11], v3, {srd(R_WS)}, s{sB0} offen {fl}
    s_waitcnt lgkmcnt(0)
    buffer_store_dwordx4 v[12:15], v3, {srd(R_WS)}, s{sB1} offen {fl}""")
def kernel_p2(name):
    a = Asm()
    a(f"""
    s_cmp_ge_u32 s2, 264
    s_cbranch_scc1 {name}_end""")
    load_args(a); lane_setup(a); mk_table_srd(a, name); p2_ids(a)
    a("    s_waitcnt lgkmcnt(0)")
    mk_srd(a, R_WS, S_WS, WS_SIZE); mk_srd(a, R_WR, S_WR, 2101248); mk_srd(a, R_WI, S_WI, 2101248)
    first = BLK[("2A",0)]
    TAB, LI, LW, LO = 0, 10240, 26752, 47232
    p2_issue_in(a); p2_issue_w(a)
    dma_tables(a, first, 10, TAB)
    a("    s_waitcnt vmcnt(0)")
    p2_in_to_lds(a, LI); p2_w_to_lds(a, LW)
    a("    s_waitcnt lgkmcnt(0)\n    s_barrier")
    p2_read_tables(a, TAB, first)
    a("    s_waitcnt lgkmcnt(0)")
    p2_compute(a, LI, LW, LO)
    p2_out(a, LO)
    a(f"{name}_end:\n    s_endpgm")
    return a, 128, 67712
```

```python
from common import *
from p1 import sW,sT0,sT1,sT2,sT3,sT4,sT5,sRowI,sRow,vLane,vL16,vG,vB,lane_setup,dma_tables,r8_matrix
sL0, sL1, sLN, sIdx, sMb, sRs, sRsel = 83,84,85,86,87,88,89
ROW3 = 2368
def argmax_keys(a, dst_s, tmp, src_off=WS_CAND, fl=""):
    a(f"""
    buffer_load_dwordx4 {v4(tmp)}, v{vL16}, {srd(R_WS)}, s{sT5} offen {fl}""")
def argmax_finish(a, dst_s, tmp):
    a(f"""
    v_max3_u32 v{tmp}, v{tmp}, v{tmp+1}, v{tmp+2}
    v_max_u32 v{tmp}, v{tmp}, v{tmp+3}""")
    for m in ("row_shr:1 row_mask:0xf","row_shr:2 row_mask:0xf","row_shr:4 row_mask:0xf","row_shr:8 row_mask:0xf","row_bcast:15 row_mask:0xa","row_bcast:31 row_mask:0xc"):
        a(f"    v_max_u32_dpp v{tmp}, v{tmp}, v{tmp} {m} bank_mask:0xf")
    a(f"    v_readlane_b32 s{dst_s}, v{tmp}, 63")
def p3_issue_in(a, IN=8, NQ=16, fl=""):
    a(f"""
    s_lshr_b32 s{sT0}, s2, 1
    s_mul_i32 s{sL0}, s{sT0}, {B_IP}
    s_and_b32 s{sT0}, s2, 1
    s_lshl_b32 s{sT0}, s{sT0}, 6
    s_add_u32 s{sL0}, s{sL0}, s{sT0}
    s_add_u32 s{sL0}, s{sL0}, {WS_B}
    s_add_u32 s{sLN}, s{sL0}, {32*128}
    s_lshl_b32 s{sT0}, s{sW}, 9
    s_add_u32 s{sL0}, s{sL0}, s{sT0}
    s_add_u32 s{sL1}, s{sL0}, {33*128}
    v_mul_u32_u24 v6, {2*33*128}, v{vG}
    v_lshrrev_b32 v7, 2, v{vB}
    v_lshl_add_u32 v7, v7, 7, v6
    v_and_b32 v3, 3, v{vB}
    v_lshl_add_u32 v7, v3, 4, v7
    buffer_load_dwordx4 {v4(IN)}, v7, {srd(R_WS)}, s{sL0} offen {fl}
    buffer_load_dwordx4 {v4(IN+4)}, v7, {srd(R_WS)}, s{sL1} offen {fl}""")
def p3_issue_nyq(a, NQ=16, fl=""):
    a(f"""
    v_mul_u32_u24 v6, {2*33*128}, v{vG}
    s_add_u32 s{sT0}, s{sLN}, {33*128}
    buffer_load_dword v{NQ}, v6, {srd(R_WS)}, s{sLN} offen {fl}
    buffer_load_dword v{NQ+1}, v6, {srd(R_WS)}, s{sT0} offen {fl}""")
def p3_issue_x(a, XR):
    a(f"""
    s_lshl_b32 s{sRowI}, s{sW}, 8
    s_add_u32 s{sRowI}, s{sRowI}, s2
    s_lshl_b32 s{sRow}, s{sRowI}, 11
    v_lshlrev_b32 v3, 6, v{vB}
    v_lshl_add_u32 v3, v{vG}, 4, v3
    buffer_load_dwordx4 {v4(XR)}, v3, {srd(R_X)}, s{sRow} offen
    buffer_load_dwordx4 {v4(XR+4)}, v3, {srd(R_X)}, s{sRow} offen offset:1024""")
T3A,T3W,T3B = 24,40,24
XR, GP = 56, 64
def p3_read_tables(a, TAB, first):
    o = lambda k: TAB + (BLK[k]-first)*1024
    for bh in range(2):
        for oc in range(2): a(f"    ds_read_b128 {v4(T3A+8*bh+4*oc)}, v{vL16} offset:{o(('3A',bh,oc))}")
    for ch in range(2):
        for bh in range(2): a(f"    ds_read_b128 {v4(T3W+8*ch+4*bh)}, v{vL16} offset:{o(('3W',ch,bh))}")
def p3_read_t3b(a, TAB, first):
    o = lambda k: TAB + (BLK[k]-first)*1024
    for ch in range(2):
        for ah in range(2): a(f"    ds_read_b128 {v4(T3B+8*ch+4*ah)}, v{vL16} offset:{o(('3B',ch,ah))}")
R8I = 126
def p3_r8(a, LX3, IN=8, NQ=16):
    OP, D, PKd = 72, 80, 96
    for tau in range(4):
        a(f"    v_mov_b32 v{OP+2*tau}, v{IN+tau}\n    v_mov_b32 v{OP+2*tau+1}, v{IN+4+tau}")
    for tau in range(4):
        a(f"    v_mfma_f32_16x16x16_bf16 {v4(D+4*tau)}, {v2(R8I)}, {v2(OP+2*tau)}, 0")
    a(f"""
    v_mul_u32_u24 v6, {2*ROW3}, v{vG}
    v_lshl_add_u32 v6, v{vB}, 4, v6
    s_lshr_b32 s{sT0}, s{sW}, 1
    s_lshl_b32 s{sT0}, s{sT0}, 6
    s_lshl_b32 s{sT1}, s{sW}, 8
    s_add_u32 s{sT0}, s{sT0}, s{sT1}
    s_add_u32 s{sT0}, s{sT0}, {LX3}
    v_add_u32 v6, s{sT0}, v6""")
    for e in range(2):
        for tau in range(4):
            a(f"    v_cvt_pk_bf16_f32 v{PKd+4*e+tau}, v{D+4*tau+2*e}, v{D+4*tau+2*e+1}")
        a(f"    ds_write_b128 v6, {v4(PKd+4*e)} offset:{ROW3*e}")
    lab = f"Lp3n_{len(a.lines)}"
    a(f"""
    s_cmp_lg_u32 s{sW}, 7
    s_cbranch_scc1 {lab}
    v_mfma_f32_16x16x16_bf16 v[104:107], {v2(R8I)}, {v2(NQ)}, 0
    v_mul_u32_u24 v6, {2*ROW3}, v{vG}
    v_cmp_eq_u32 vcc, 0, v{vB}
    s_and_saveexec_b64 s[90:91], vcc
    v_cvt_pk_bf16_f32 v104, v104, v105
    v_cvt_pk_bf16_f32 v105, v106, v107
    ds_write_b32 v6, v104 offset:{LX3+576*4}
    ds_write_b32 v6, v105 offset:{LX3+576*4+ROW3}
    s_mov_b64 exec, s[90:91]
{lab}:""")
def p3_rows(a, LX3, TAB, first):
    ZO, D, ZZ, TM = 8, 80, 8, 112
    a(f"""
    v_mul_u32_u24 v6, 576, v{vG}
    v_lshl_add_u32 v6, v{vB}, 2, v6
    s_mul_i32 s{sT0}, s{sW}, {ROW3}
    s_add_u32 s{sT0}, s{sT0}, {LX3}
    v_add_u32 v6, s{sT0}, v6
    v_mov_b32 v7, s{sT0}""")
    for ch in range(2):
        a(f"    ds_read2_b32 {v2(ZO+4*ch)}, v6 offset0:{16*ch} offset1:{16*ch+32}")
        a(f"    ds_read2_b32 {v2(ZO+4*ch+2)}, v6 offset0:{16*ch+64} offset1:{16*ch+96}")
    a(f"    ds_read_b32 v122, v7\n    ds_read_b32 v123, v7 offset:{576*4}")
    for ch in range(2):
        a(f"    s_waitcnt lgkmcnt({4-2*ch})")
        for bh in range(2):
            for oc in range(2):
                a(f"    v_mfma_f32_16x16x32_bf16 {v4(D+16*ch+8*bh+4*oc)}, {v4(ZO+4*ch)}, {v4(T3A+8*bh+4*oc)}, 0")
    a("    s_waitcnt lgkmcnt(0)")
    p3_read_t3b(a, TAB, first)
    a(f"""
    v_lshlrev_b32 v122, 16, v122            ; z0.re
    v_lshlrev_b32 v123, 16, v123            ; zq.re
    v_sub_f32 v120, v123, v122
    v_add_f32 v121, v123, v122
    v_mul_f32 v120, 0x36000000, v120        ; (zq - z0) * 2^-19
    v_mul_f32 v121, 0xb6000000, v121        ; -(zq + z0) * 2^-19""")
    ZZ = 96
    for ch in range(2):
        for bh in range(2):
            gr = D+16*ch+8*bh; gi = gr+4; tw = T3W+8*ch+4*bh
            for r in range(4):
                a(f"    v_fma_mix_f32 v{TM+2*r}, v{gr+r}, v{tw+r}, 0 op_sel:[0,0,0] op_sel_hi:[0,1,0]")
                a(f"    v_fma_mix_f32 v{TM+2*r+1}, v{gr+r}, v{tw+r}, 0 op_sel:[0,1,0] op_sel_hi:[0,1,0]")
            for r in range(4):
                a(f"    v_fma_mix_f32 v{TM+2*r}, -v{gi+r}, v{tw+r}, v{TM+2*r} op_sel:[0,1,0] op_sel_hi:[0,1,0]")
                a(f"    v_fma_mix_f32 v{TM+2*r+1}, v{gi+r}, v{tw+r}, v{TM+2*r+1} op_sel:[0,0,0] op_sel_hi:[0,1,0]")
            dst = (8 + 8*ch + 4*bh)
            for r in range(4): a(f"    v_cvt_pk_bf16_f32 v{dst+r}, v{TM+2*r}, v{TM+2*r+1}")
    a("    s_waitcnt lgkmcnt(0)")
    for bh in range(2):
        for ah in range(2):
            d = 80+8*bh+4*ah
            for ch in range(2):
                c = "0" if ch == 0 else v4(d)
                a(f"    v_mfma_f32_16x16x32_bf16 {v4(d)}, {v4(8+8*ch+4*bh)}, {v4(T3B+8*ch+4*ah)}, {c}")

LOG2E = "0x3fb8aa3b"
def silu_pair(a, z0, z1, t0, t1, dst, sNL):
    a(f"""
    v_mul_f32 v{t0}, s{sNL}, v{z0}
    v_mul_f32 v{t1}, s{sNL}, v{z1}
    v_exp_f32 v{t0}, v{t0}
    v_exp_f32 v{t1}, v{t1}
    v_add_f32 v{t0}, 1.0, v{t0}
    v_add_f32 v{t1}, 1.0, v{t1}
    v_rcp_f32 v{t0}, v{t0}
    v_rcp_f32 v{t1}, v{t1}
    v_mul_f32 v{t0}, v{z0}, v{t0}
    v_mul_f32 v{t1}, v{z1}, v{t1}
    v_cvt_pk_bf16_f32 v{dst}, v{t0}, v{t1}""")
def xn_pair(a, xr, z0, z1):
    a(f"""
    v_lshlrev_b32 v{z0}, 16, v{xr}
    v_and_b32 v{z1}, 0xffff0000, v{xr}
    v_subrev_f32 v{z0}, s{sMb}, v{z0}
    v_subrev_f32 v{z1}, s{sMb}, v{z1}
    v_cvt_pk_bf16_f32 v{z0}, v{z0}, v{z1}
    v_and_b32 v{z1}, 0xffff0000, v{z0}
    v_lshlrev_b32 v{z0}, 16, v{z0}
    v_mul_f32 v{z0}, s{sRs}, v{z0}
    v_mul_f32 v{z1}, s{sRs}, v{z1}
    v_cvt_pk_bf16_f32 v{z0}, v{z0}, v{z1}
    v_and_b32 v{z1}, 0xffff0000, v{z0}
    v_lshlrev_b32 v{z0}, 16, v{z0}""")
def p3_gate(a, YL=None):
    a(f"    s_mov_b32 s{sT0}, 0xbfb8aa3b")
    for dw in range(8):
        z0, z1, t0, t1 = 112+4*(dw&1), 113+4*(dw&1), 114+4*(dw&1), 115+4*(dw&1)
        xn_pair(a, XR+dw, z0, z1)
        if YL is not None:
            a(f"""
    v_add_f32 v{z0}, v{z0}, v{YL+2*dw}
    v_add_f32 v{z1}, v{z1}, v{YL+2*dw+1}
    v_cvt_pk_bf16_f32 v{z0}, v{z0}, v{z1}
    v_and_b32 v{z1}, 0xffff0000, v{z0}
    v_lshlrev_b32 v{z0}, 16, v{z0}""")
        silu_pair(a, z0, z1, t0, t1, GP+dw, sT0)
def p3_final(a):
    a(f"    s_mov_b32 s{sT0}, 0x36800000")
    O = 8
    for ah in range(2):
        for dw in range(4):
            bh, r2 = dw >> 1, dw & 1
            d = 80+8*bh+4*ah+2*r2
            xr, g = XR+4*ah+dw, GP+4*ah+dw
            t = 96 + 6*(dw&1) + 12*(ah&1)
            a(f"""
    v_fma_f32 v{t}, v{d}, s{sT0}, v120
    v_fma_f32 v{t+1}, v{d+1}, s{sT0}, v121
    v_cvt_pk_bf16_f32 v{t}, v{t}, v{t+1}
    v_lshlrev_b32 v{t+2}, 16, v{g}
    v_and_b32 v{t+3}, 0xffff0000, v{g}
    v_and_b32 v{t+1}, 0xffff0000, v{t}
    v_lshlrev_b32 v{t}, 16, v{t}
    v_mul_f32 v{t}, v{t}, v{t+2}
    v_mul_f32 v{t+1}, v{t+1}, v{t+3}
    v_cvt_pk_bf16_f32 v{t}, v{t}, v{t+1}
    v_lshlrev_b32 v{t+2}, 16, v{xr}
    v_and_b32 v{t+3}, 0xffff0000, v{xr}
    v_and_b32 v{t+1}, 0xffff0000, v{t}
    v_lshlrev_b32 v{t}, 16, v{t}
    v_add_f32 v{t}, v{t}, v{t+2}
    v_add_f32 v{t+1}, v{t+1}, v{t+3}
    v_cvt_pk_bf16_f32 v{O+4*ah+dw}, v{t}, v{t+1}""")
        a(f"""
    v_lshlrev_b32 v3, 6, v{vB}
    v_lshl_add_u32 v3, v{vG}, 4, v3
    buffer_store_dwordx4 {v4(O+4*ah)}, v3, {srd(R_OUT)}, s{sRow} offen offset:{1024*ah}""")
def key_decode(a, sKeyIn):
    a(f"""
    s_and_b32 s{sIdx}, s{sKeyIn}, 0x7ff
    s_sub_u32 s{sIdx}, 2047, s{sIdx}
    s_lshr_b32 s{sT0}, s{sKeyIn}, 16
    s_and_b32 s{sT1}, s{sT0}, 0x7fff
    s_xor_b32 s{sT2}, s{sT0}, 0xffff
    s_bitcmp1_b32 s{sT0}, 15
    s_cselect_b32 s{sT0}, s{sT1}, s{sT2}
    s_lshl_b32 s{sT0}, s{sT0}, 16
    v_mov_b32 v6, s{sT0}
    v_mul_f32 v6, 0xbfb8aa3b, v6
    v_exp_f32 v6, v6
    v_add_f32 v6, 1.0, v6
    v_rcp_f32 v6, v6
    v_cvt_pk_bf16_f32 v6, v6, v6
    v_and_b32 v6, 0xffff0000, v6
    v_readfirstlane_b32 s{sRsel}, v6""")
def y_reduce(a, LY, tag, fl=""):
    a(f"""
    v_and_b32 v6, 255, v0
    v_lshlrev_b32 v6, 4, v6
    v_lshrrev_b32 v7, 8, v0
    v_lshl_add_u32 v3, v7, 15, v6           ; half*8*4096
    s_mov_b32 s{sT0}, {WS_Y}""")
    for m in range(8):
        a(f"    s_add_u32 s{sT1}, s{sT0}, {4096*m}\n    buffer_load_dwordx4 {v4(80+4*m)}, v3, {srd(R_WS)}, s{sT1} offen {fl}")
    a("    s_waitcnt vmcnt(0)")
    for m in range(1,8):
        for k in range(4): a(f"    v_add_f32 v{80+k}, v{80+k}, v{80+4*m+k}")
    a(f"""
    v_lshl_add_u32 v6, v7, 12, v6
    ds_write_b128 v6, v[80:83] offset:{LY}
    s_waitcnt lgkmcnt(0)
    s_barrier""")
def y_fetch(a, LY, YL):
    a(f"""
    v_lshlrev_b32 v3, 7, v{vB}
    v_lshl_add_u32 v3, v{vG}, 5, v3""")
    for ah in range(2):
        a(f"    ds_read_b128 {v4(YL+8*ah)}, v3 offset:{LY+2048*ah}")
        a(f"    ds_read_b128 {v4(YL+8*ah+4)}, v3 offset:{LY+2048*ah+16}")
        a(f"    ds_read_b128 {v4(96+8*ah)}, v3 offset:{LY+4096+2048*ah}")
        a(f"    ds_read_b128 {v4(96+8*ah+4)}, v3 offset:{LY+4096+2048*ah+16}")
    a("    s_waitcnt lgkmcnt(0)")
    for k in range(16): a(f"    v_add_f32 v{YL+k}, v{YL+k}, v{96+k}")
    for k in range(0,16,2):
        a(f"""
    v_cvt_pk_bf16_f32 v{96+k}, v{YL+k}, v{YL+k+1}
    v_and_b32 v{YL+k+1}, 0xffff0000, v{96+k}
    v_lshlrev_b32 v{YL+k}, 16, v{96+k}
    v_mul_f32 v{YL+k}, s{sRsel}, v{YL+k}
    v_mul_f32 v{YL+k+1}, s{sRsel}, v{YL+k+1}
    v_cvt_pk_bf16_f32 v{96+k}, v{YL+k}, v{YL+k+1}
    v_and_b32 v{YL+k+1}, 0xffff0000, v{96+k}
    v_lshlrev_b32 v{YL+k}, 16, v{96+k}""")
def kernel_p3(name):
    a = Asm()
    a(f"""
    s_cmp_ge_u32 s2, 256
    s_cbranch_scc1 {name}_end""")
    load_args(a); lane_setup(a); mk_table_srd(a, name)
    a("    s_waitcnt lgkmcnt(0)")
    mk_srd(a, R_WS, S_WS, WS_SIZE); mk_srd(a, R_X, S_X, 4194304); mk_srd(a, R_OUT, S_OUT, 4194304)
    first = BLK[("3A",0,0)]
    TAB, LX3, LY = 0, 12288, 12288+8*ROW3
    p3_issue_in(a); p3_issue_nyq(a, 124); p3_issue_x(a, XR)
    a(f"    s_mov_b32 s{sT5}, {WS_CAND}")
    argmax_keys(a, 90, 16)
    a(f"""
    s_lshl_b32 s{sT0}, s{sRowI}, 3
    s_add_u32 s{sT0}, s{sT0}, {WS_ST}
    s_load_dwordx2 s[{sMb}:{sMb+1}], s[24:25], s{sT0}""".replace(f"s[{sMb}:{sMb+1}]", "s[92:93]"))
    dma_tables(a, first, 12, TAB)
    r8_matrix(a, R8I, True, 112)
    a(f"""
    s_waitcnt vmcnt(0) lgkmcnt(0)
    s_mov_b32 s{sMb}, s92
    s_mov_b32 s{sRs}, s93""")
    argmax_finish(a, 94, 16)
    key_decode(a, 94)
    a("    s_barrier")
    p3_read_tables(a, TAB, first)
    p3_r8(a, LX3, 8, 124)
    a(f"""
    s_and_b32 s{sT0}, s{sIdx}, 255
    s_cmp_eq_u32 s{sT0}, s2
    s_cbranch_scc0 {name}_noown""")
    y_reduce(a, LY, name)
    a(f"""
    s_cmp_eq_u32 s{sIdx}, s{sRowI}
    s_cbranch_scc0 {name}_noown""")
    y_fetch(a, LY, 80)
    p3_gate(a, 80)
    a(f"    s_branch {name}_gdone\n{name}_noown:")
    p3_gate(a)
    a(f"{name}_gdone:\n    s_waitcnt lgkmcnt(0)\n    s_barrier")
    p3_rows(a, LX3, TAB, first)
    p3_final(a)
    a(f"{name}_end:\n    s_endpgm")
    return a, 128, LY + 8192
```

```python
import numpy as np
PI = np.pi
def bf16_bits(x):
    u = np.asarray(x, np.float32).view(np.uint32).astype(np.uint64)
    return (((u + 0x7fff + ((u >> 16) & 1)) >> 16) & 0xffff).astype(np.uint16)
def bf16r(x):
    return (bf16_bits(x).astype(np.uint32) << 16).view(np.float32)
def f16_bits(x): return np.asarray(x, np.float64).astype(np.float16).view(np.uint16)
def f16r(x): return np.asarray(x).astype(np.float16).astype(np.float32)
def pack(vals, kind):
    b = bf16_bits(vals) if kind == "bf16" else f16_bits(vals)
    b = b.astype(np.uint32).reshape(64, -1, 2)
    return (b[:, :, 0] | (b[:, :, 1] << 16)).astype(np.uint32)
SC1 = 0.25
L = np.arange(64); G = L >> 4; LO = L & 15
def c_(x): return np.cos(x)
def s_(x): return np.sin(x)
def fwd_pair(th, oc):
    return (c_(th), s_(th)) if oc == 0 else (-s_(th), c_(th))
def inv_pair(th, oc):
    return (c_(th), -s_(th)) if oc == 0 else (s_(th), c_(th))
def build():
    T = {}
    for ch in range(2):
        for oc in range(2):
            v = np.zeros((64, 8))
            for q in range(8):
                a = 8*G + q; c = 16*ch + LO
                th = 2*PI*((a*c) % 32)/32
                v[:, q] = (c_(th) if oc == 0 else -s_(th))*SC1
            T[("1A", ch, oc)] = pack(v, "bf16")
    for ch in range(2):
        for t in range(2):
            v = np.zeros((64, 8))
            for r in range(4):
                b = 8*G + 2*r + t; c = 16*ch + LO
                th = 2*PI*((b*c) % 1024)/1024
                v[:, 2*r] = c_(th); v[:, 2*r+1] = -s_(th)
            T[("1W", ch, t)] = pack(v, "f16")
    for sg in range(2):
        for rho in range(2):
            v = np.zeros((64, 8))
            gam = LO >> 2; d0 = (LO >> 1) & 1; oc = LO & 1
            d = 8*rho + 2*gam + d0
            for r in range(4):
                b = 8*G + 2*r + sg
                th = 2*PI*((b*d) % 32)/32
                p0 = fwd_pair(th, 0); p1 = fwd_pair(th, 1)
                v[:, 2*r] = np.where(oc == 0, p0[0], p1[0]); v[:, 2*r+1] = np.where(oc == 0, p0[1], p1[1])
            T[("1B", sg, rho)] = pack(v, "f16")
    for oc in range(2):
        v = np.zeros((64, 8))
        for t in range(4):
            a = 4*G + t; c = LO
            th = 2*PI*((a*c) % 16)/16
            p = fwd_pair(th, oc); v[:, 2*t] = p[0]; v[:, 2*t+1] = p[1]
        T[("2A", oc)] = pack(v, "f16")
    v = np.zeros((64, 8))
    for r in range(4):
        b = 4*G + r; c = LO; th = 2*PI*((b*c) % 256)/256
        v[:, 2*r] = c_(th); v[:, 2*r+1] = -s_(th)
    T[("2W",)] = pack(v, "f16")
    for rho in range(2):
        v = np.zeros((64, 8))
        gam = LO >> 2; d0 = (LO >> 1) & 1; oc = LO & 1
        d = 4*gam + 2*rho + d0
        for r in range(4):
            b = 4*G + r; th = 2*PI*((b*d) % 16)/16
            p0 = fwd_pair(th, 0); p1 = fwd_pair(th, 1)
            v[:, 2*r] = np.where(oc == 0, p0[0], p1[0]); v[:, 2*r+1] = np.where(oc == 0, p0[1], p1[1])
        T[("2B", rho)] = pack(v, "f16")
    for oc in range(2):
        v = np.zeros((64, 8))
        for t in range(4):
            d = 4*G + t; e = LO; th = 2*PI*((d*e) % 16)/16
            p = inv_pair(th, oc); v[:, 2*t] = p[0]; v[:, 2*t+1] = p[1]
        T[("2C", oc)] = pack(v, "bf16")
    v = np.zeros((64, 8))
    for r in range(4):
        c = 4*G + r; e = LO; th = 2*PI*((c*e) % 256)/256
        v[:, 2*r] = c_(th); v[:, 2*r+1] = s_(th)
    T[("2V",)] = pack(v, "f16")
    for rho in range(2):
        v = np.zeros((64, 8))
        gam = LO >> 2; f0 = (LO >> 1) & 1; oc = LO & 1
        f = 4*gam + 2*rho + f0
        for r in range(4):
            c = 4*G + r; th = 2*PI*((c*f) % 16)/16
            p0 = inv_pair(th, 0); p1 = inv_pair(th, 1)
            v[:, 2*r] = np.where(oc == 0, p0[0], p1[0]); v[:, 2*r+1] = np.where(oc == 0, p0[1], p1[1])
        T[("2D", rho)] = pack(v, "bf16")
    def bmap(bh, j): return 8*(j >> 2) + 4*bh + (j & 3)
    for bh in range(2):
        for oc in range(2):
            v = np.zeros((64, 8))
            b = bmap(bh, LO)
            for p in range(4):
                d = 4*G + p; th = 2*PI*((b*d) % 32)/32
                q = inv_pair(th, oc); v[:, 2*p] = q[0]; v[:, 2*p+1] = q[1]
            T[("3A", bh, oc)] = pack(v, "bf16")
    for ch in range(2):
        for bh in range(2):
            v = np.zeros((64, 8))
            b = bmap(bh, LO)
            for rho in range(4):
                c = 16*ch + 4*G + rho; th = 2*PI*((b*c) % 1024)/1024
                v[:, 2*rho] = c_(th); v[:, 2*rho+1] = s_(th)
            T[("3W", ch, bh)] = pack(v, "f16")
    for ch in range(2):
        for ah in range(2):
            v = np.zeros((64, 8))
            a = 16*ah + LO
            for rho in range(4):
                c = 16*ch + 4*G + rho; th = 2*PI*((a*c) % 32)/32
                v[:, 2*rho] = c_(th); v[:, 2*rho+1] = -s_(th)
            T[("3B", ch, ah)] = pack(v, "bf16")
    return T
ORDER = ([("1A",ch,oc) for ch in range(2) for oc in range(2)] + [("1W",ch,t) for ch in range(2) for t in range(2)] +
         [("1B",sg,rho) for sg in range(2) for rho in range(2)] +
         [("2A",0),("2A",1),("2W",),("2B",0),("2B",1),("2C",0),("2C",1),("2V",),("2D",0),("2D",1)] +
         [("3A",bh,oc) for bh in range(2) for oc in range(2)] + [("3W",ch,bh) for ch in range(2) for bh in range(2)] +
         [("3B",ch,ah) for ch in range(2) for ah in range(2)])
BLK = {k: i for i, k in enumerate(ORDER)}
def table_words():
    T = build()
    return np.concatenate([T[k].reshape(-1) for k in ORDER])
if __name__ == "__main__":
    w = table_words(); print(len(w), "dwords", len(ORDER), "blocks")
```

```python
from build import *
from p1 import kernel_p1
from p2 import kernel_p2
from p3 import kernel_p3
from moe import kernel_m1, kernel_m2
import sys
ks = []; ls = []
for name, fn, grid in (("k1_kernel", kernel_p1, 256), ("k2_kernel", kernel_p2, 264), ("m1_kernel", kernel_m1, 224), ("m2_kernel", kernel_m2, 256), ("k4_kernel", kernel_p3, 256)):
    a, vg, lds = fn(name); ks.append((name, a, vg)); ls.append((name, grid, 512, lds))
assemble_list(ks, ls, "out_all.s")
```

```python
from asmgen import *
from tables import BLK, ORDER, table_words
WS_NONCE = 0x0
WS_IDX = 0x1000
WS_CANDR = 0x4000
WS_A   = 0x100000
A_JP   = 17*256*128
A_KP   = 256*128
WS_B   = 0x600000
B_IP   = 264*128
WS_ST  = 0xB00000
WS_CAND= 0xB10000
WS_H   = 0xB20000
WS_Y   = 0xB30000
WS_PART= 0xB50000
WS_SIZE= 0x1000000
S_X,S_WR,S_WI,S_BX,S_BW,S_G,S_U,S_D = 4,6,8,10,12,14,16,18
S_OUT,S_DBG,S_WS = 20,22,24
R_X,R_WS,R_T,R_OUT,R_WR,R_WI,R_BW,R_G,R_U,R_D = 28,32,36,40,44,48,52,56,60,64
def srd(r): return f"s[{r}:{r+3}]"
def mk_srd(a, r, p, size):
    a(f"""
    s_mov_b32 s{r}, s{p}
    s_mov_b32 s{r+1}, s{p+1}
    s_mov_b32 s{r+2}, {size}
    s_mov_b32 s{r+3}, 0x00020000""")
def load_args(a):
    a("""
    s_load_dwordx16 s[4:19], s[0:1], 0
    s_load_dwordx4 s[20:23], s[0:1], 64
    s_load_dwordx2 s[24:25], s[0:1], 80""")
def mk_table_srd(a, lab):
    a(f"""
    s_getpc_b64 s[{R_T}:{R_T+1}]
{lab}_pc:
    s_add_u32 s{R_T}, s{R_T}, fft_tables-{lab}_pc
    s_addc_u32 s{R_T+1}, s{R_T+1}, 0
    s_mov_b32 s{R_T+2}, {len(ORDER)*1024}
    s_mov_b32 s{R_T+3}, 0x00020000""")
def v4(r): return f"v[{r}:{r+3}]"
def v2(r): return f"v[{r}:{r+1}]"
def interleave(a, main, fill, per=2):
    fill=list(fill)
    for m in main:
        a(m)
        for _ in range(per):
            if fill: a(fill.pop(0))
    for f in fill: a(f)
def dpp_sum_steps(v):
    return [f"    v_add_f32_dpp v{v}, v{v}, v{v} row_shr:1 row_mask:0xf bank_mask:0xf",
            f"    v_add_f32_dpp v{v}, v{v}, v{v} row_shr:2 row_mask:0xf bank_mask:0xf",
            f"    v_add_f32_dpp v{v}, v{v}, v{v} row_shr:4 row_mask:0xf bank_mask:0xf",
            f"    v_add_f32_dpp v{v}, v{v}, v{v} row_shr:8 row_mask:0xf bank_mask:0xf",
            f"    v_add_f32_dpp v{v}, v{v}, v{v} row_bcast:15 row_mask:0xa bank_mask:0xf",
            f"    v_add_f32_dpp v{v}, v{v}, v{v} row_bcast:31 row_mask:0xc bank_mask:0xf"]
def table_data():
    w = table_words()
    s = ".p2align 8\nfft_tables:\n"
    for i in range(0, len(w), 8):
        s += "    .long " + ",".join("0x%x" % int(x) for x in w[i:i+8]) + "\n"
    return s
def kdesc(name, vgpr, sgpr=102):
    acc = (vgpr + 3)//4*4
    return f""".amdhsa_kernel {name}
  .amdhsa_next_free_vgpr {vgpr}
  .amdhsa_next_free_sgpr {sgpr}
  .amdhsa_accum_offset {acc}
  .amdhsa_group_segment_fixed_size 0
  .amdhsa_kernarg_size 88
  .amdhsa_user_sgpr_count 2
  .amdhsa_user_sgpr_kernarg_segment_ptr 1
  .amdhsa_system_sgpr_workgroup_id_x 1
  .amdhsa_float_denorm_mode_32 3
  .amdhsa_float_denorm_mode_16_64 3
.end_amdhsa_kernel
"""
```

```python
from common import *
import p1, p2, p3, moe
from p1 import sW,sT0,sT1,sT2,sT3,sT4,sT5,sRow,sRowI,sKey,sA0,sA1,sAN,vLane,vL16,vXo,vG,vB,lane_setup,r8_matrix,ln_stats
from p2 import sJP,sKB,sIn,sWo,sSh,sB0,sB1
TAB  = 0
LI   = 22528
LY   = 22528
LW   = 39040
LX3  = 39040
LX1  = 59520
LO   = 59520
KEYS = 80064
LDS_BYTES = 80384
M_RED, M_SEG, M_H, M_CTRL, M_LG, M_LU = 0, 4096, 12288, 13312, 14336, 14336+32768
sMb, sRs = 81, 82
sNonce, sTag8, sTA = 95, 96, 97
sRole, sPoll = 26, 27
sEx = 90
MAXPOLL = 20000
FL = "sc0 sc1"
def derive_tags(a):
    a(f"""
    s_add_u32 s{sNonce}, s{sNonce}, 1
    s_and_b32 s{sTag8}, s{sNonce}, 0xff""")
    for u in range(4):
        a(f"""
    s_bfe_u32 s{sT0}, s{sTag8}, {(1<<16) | (2*u)}
    s_bfe_u32 s{sT1}, s{sTag8}, {(1<<16) | (2*u+1)}
    s_lshl_b32 s{sT1}, s{sT1}, 16
    s_or_b32 s{sTA+u}, s{sT0}, s{sT1}""")
def poll_tail(a, lab, done, sleep):
    a(f"""
    s_nop 4
    s_cbranch_vccz {done}
    s_add_u32 s{sPoll}, s{sPoll}, 1
    s_cmp_gt_u32 s{sPoll}, {MAXPOLL}
    s_cbranch_scc1 {done}
    s_sleep {sleep}
    s_branch {lab}
{done}:""")
def dma_all_tables(a, slots):
    for k in slots:
        lab = f"Ldt_{k}_{len(a.lines)}"
        a(f"    s_add_u32 s{sT0}, s{sW}, {8*k}")
        if k == 4: a(f"    s_cmp_ge_u32 s{sT0}, 34\n    s_cbranch_scc1 {lab}")
        a(f"""
    s_add_u32 s{sT0}, s{sT0}, 22
    s_sub_u32 s{sT1}, s{sT0}, 34
    s_cmp_ge_u32 s{sT0}, 34
    s_cselect_b32 s{sT0}, s{sT1}, s{sT0}
    s_lshl_b32 s{sT0}, s{sT0}, 10
    s_mov_b32 m0, s{sT0}
    s_nop 0
    buffer_load_dwordx4 v{vL16}, {srd(R_T)}, s{sT0} offen lds""")
        if k == 4: a(f"{lab}:")
def b_line_addr(a, vdst, t0):
    a(f"""
    v_lshrrev_b32 v{vdst}, 3, v{vLane}
    s_mov_b32 s{sT1}, {B_IP}
    v_mul_lo_u32 v{vdst}, v{vdst}, s{sT1}
    v_and_b32 v{t0}, 7, v{vLane}
    v_lshl_add_u32 v{vdst}, v{t0}, 4, v{vdst}
    s_mul_i32 s{sB0}, s{sJP}, 33
    s_add_u32 s{sB0}, s{sB0}, s{sKB}
    s_lshl_b32 s{sB0}, s{sB0}, 7
    s_mul_i32 s{sT0}, s{sW}, {16*B_IP}
    s_add_u32 s{sB0}, s{sB0}, s{sT0}
    s_add_u32 s{sB0}, s{sB0}, {WS_B}
    s_add_u32 s{sB1}, s{sB0}, {8*B_IP}""")
def clean_b(a):
    lab = f"Lcl_{len(a.lines)}"
    a("    v_mov_b32 v100, -1\n    v_mov_b32 v101, -1\n    v_mov_b32 v102, -1\n    v_mov_b32 v103, -1")
    b_line_addr(a, 104, 105)
    a(f"""
    buffer_store_dwordx4 v[100:103], v104, {srd(R_WS)}, s{sB0} offen {FL}
    buffer_store_dwordx4 v[100:103], v104, {srd(R_WS)}, s{sB1} offen {FL}
    s_cmp_lg_u32 s{sW}, 0
    s_cbranch_scc1 {lab}
    v_lshrrev_b32 v104, 3, v{vLane}
    s_lshl_b32 s{sT0}, s2, 2
    v_add_u32 v104, s{sT0}, v104
    v_lshrrev_b32 v105, 3, v104
    s_mov_b32 s{sT1}, {B_IP}
    v_mul_lo_u32 v105, v105, s{sT1}
    v_and_b32 v104, 7, v104
    v_mul_u32_u24 v104, {33*128}, v104
    v_add_u32 v104, v104, v105
    v_and_b32 v105, 7, v{vLane}
    v_lshl_add_u32 v104, v105, 4, v104
    s_mov_b32 s{sT0}, {WS_B + 32*128}
    v_cmp_gt_u32 vcc, 32, v{vLane}
    s_and_saveexec_b64 s[{sEx}:{sEx+1}], vcc
    buffer_store_dwordx4 v[100:103], v104, {srd(R_WS)}, s{sT0} offen {FL}
    s_mov_b64 exec, s[{sEx}:{sEx+1}]
{lab}:""")
def fft_p1(a, st):
    X, WRr, WR, xf, acc, DB, XN, T1A, D = 8, 16, 24, 32, 48, 52, 60, 68, 84
    R8M = 116
    W0, W1 = 84, 92
    r8_matrix(a, R8M, False, 118)
    a(f"    s_mov_b32 s{sT3}, 0x05040100\n    s_mov_b32 s{sT4}, 0x07060302")
    a("    s_waitcnt vmcnt(16)")
    if st: st.mark(a)
    a("    s_barrier")
    for ch in range(2):
        for oc in range(2):
            a(f"    ds_read_b128 {v4(T1A+8*ch+4*oc)}, v{vL16} offset:{TAB+BLK[('1A',ch,oc)]*1024}")
    ln_stats(a, X, xf, DB, acc, sMb, sRs, 124)
    for k in range(16): a(f"    v_mul_f32 v{xf+k}, s{sRs}, v{xf+k}")
    for t in range(2):
        for p in range(4):
            a(f"    v_cvt_pk_bf16_f32 v{XN+4*t+p}, v{xf+8*t+2*p}, v{xf+8*t+2*p+1}")
    a("    s_waitcnt vmcnt(0) lgkmcnt(0)")
    p2.p2_w_to_lds(a, LW, W0, W1)
    a(f"    s_mov_b32 s{sT3}, 0x05040100\n    s_mov_b32 s{sT4}, 0x07060302")
    for p in range(4):
        a(f"    v_perm_b32 v{WR+p}, v{WRr+2*p+1}, v{WRr+2*p}, s{sT3}")
        a(f"    v_perm_b32 v{WR+4+p}, v{WRr+2*p+1}, v{WRr+2*p}, s{sT4}")
    if st: st.mark(a)
    for ch in range(2):
        for t in range(2):
            a(f"    ds_read_b128 {v4(8+8*ch+4*t)}, v{vL16} offset:{TAB+BLK[('1W',ch,t)]*1024}")
    for ch in range(2):
        for t in range(2):
            for oc in range(2):
                a(f"    v_mfma_f32_16x16x32_bf16 {v4(D+16*ch+8*t+4*oc)}, {v4(XN+4*t)}, {v4(T1A+8*ch+4*oc)}, 0")
    for sg in range(2):
        for rho in range(2):
            a(f"    ds_read_b128 {v4(32+8*sg+4*rho)}, v{vL16} offset:{TAB+BLK[('1B',sg,rho)]*1024}")
    a(f"    s_mov_b32 s{sT1}, 0x3f803f80\n    s_mov_b32 s{sT5}, 0xbf80bf80\n    v_mov_b32 v{acc}, 0\n    v_mov_b32 v{acc+1}, 0")
    for t in range(2):
        for p in range(4):
            a(f"    v_dot2c_f32_bf16 v{acc}, v{WR+4*t+p}, v{XN+4*t+p}")
            a(f"    v_dot2c_f32_bf16 v{acc+1}, s{sT1 if t==0 else sT5}, v{XN+4*t+p}")
    for s0,s1 in zip(dpp_sum_steps(acc), dpp_sum_steps(acc+1)):
        a(s0); a(s1)
    a(f"""
    v_readlane_b32 s{sT1}, v{acc}, 63
    v_readlane_b32 s{sT2}, v{acc+1}, 63
    v_cvt_pk_bf16_f32 v{acc+2}, s{sT1}, s{sT1}
    v_mov_b32 v{acc+3}, 0x3e800000
    v_mul_f32 v{acc+3}, s{sT2}, v{acc+3}
    v_readfirstlane_b32 s{sT1}, v{acc+2}
    v_cvt_pk_f16_f32 v{acc+3}, v{acc+3}, 0
    s_and_b32 s{sT1}, s{sT1}, 0xffff
    s_or_b32 s{sT2}, s{sT1}, 0x8000
    s_xor_b32 s{sT5}, s{sT1}, 0xffff
    s_bitcmp1_b32 s{sT1}, 15
    s_cselect_b32 s{sT1}, s{sT5}, s{sT2}
    s_lshl_b32 s{sT1}, s{sT1}, 16
    s_sub_u32 s{sT2}, 2047, s{sRowI}
    s_or_b32 s{sKey}, s{sT1}, s{sT2}""")
    a(f"""
    s_lshl_b32 s{sT2}, s{sW}, 4
    s_add_u32 s{sT2}, s{sT2}, {KEYS}
    s_lshl_b32 s{sT1}, s{sW}, 2
    s_add_u32 s{sT1}, s{sT1}, {LX1 + 512*40}
    s_mov_b64 exec, 1
    v_mov_b32 v120, s{sT2}
    v_mov_b32 v52, s{sKey}
    v_mov_b32 v53, s{sMb}
    v_mov_b32 v54, s{sRs}
    v_mov_b32 v55, 0
    ds_write_b128 v120, v[52:55]
    v_mov_b32 v121, s{sT1}
    ds_write_b32 v121, v{acc+3}
    s_mov_b64 exec, -1
    s_waitcnt lgkmcnt(0)
    s_barrier""")
    lab = f"Lcand_{len(a.lines)}"
    a(f"""
    s_cmp_lg_u32 s{sW}, 7
    s_cbranch_scc1 {lab}
    v_and_b32 v120, 7, v{vLane}
    v_lshlrev_b32 v120, 4, v120
    v_add_u32 v120, {KEYS}, v120
    ds_read_b128 v[52:55], v120
    s_waitcnt lgkmcnt(0)
    v_mov_b32 v56, v52
    v_max_u32_dpp v56, v56, v56 row_shr:1 row_mask:0xf bank_mask:0xf
    v_max_u32_dpp v56, v56, v56 row_shr:2 row_mask:0xf bank_mask:0xf
    v_max_u32_dpp v56, v56, v56 row_shr:4 row_mask:0xf bank_mask:0xf
    v_readlane_b32 s{sT1}, v56, 7
    v_cmp_eq_u32 vcc, s{sT1}, v52
    s_ff1_i32_b64 s{sT2}, vcc
    v_readlane_b32 s{sT5}, v53, s{sT2}
    v_readlane_b32 s{sT0}, v54, s{sT2}
    v_mov_b32 v52, s{sT1}
    v_mov_b32 v53, s{sT5}
    v_mov_b32 v54, s{sT0}
    v_mov_b32 v55, s{sNonce}
    v_lshlrev_b32 v120, 12, v{vLane}
    s_lshl_b32 s{sT1}, s2, 4
    s_add_u32 s{sT1}, s{sT1}, {WS_CANDR}
    s_mov_b64 exec, 0xff
    buffer_store_dwordx4 v[52:55], v120, {srd(R_WS)}, s{sT1} offen {FL}
    s_mov_b64 exec, -1
{lab}:""")
    Z = 68
    for ch in range(2):
        for t in range(2):
            for r in range(4):
                a(f"    v_cvt_pk_f16_f32 v{Z+8*ch+4*t+r}, v{D+16*ch+8*t+r}, v{D+16*ch+8*t+4+r}")
        for t in range(2):
            for r in range(4):
                a(f"    v_pk_mul_f16 v{D+16*ch+8*t+r}, v{Z+8*ch+4*t+r}, v{8+8*ch+4*t+r} op_sel:[0,0] op_sel_hi:[0,1]")
        for t in range(2):
            for r in range(4):
                a(f"    v_pk_fma_f16 v{Z+8*ch+4*t+r}, v{Z+8*ch+4*t+r}, v{8+8*ch+4*t+r}, v{D+16*ch+8*t+r} op_sel:[1,1,0] op_sel_hi:[1,0,1] neg_lo:[0,1,0]")
        D2 = 84 + 8*ch
        for sg in range(2):
            for rho in range(2):
                c = "0" if sg == 0 else v4(D2+4*rho)
                a(f"    v_mfma_f32_16x16x32_f16 {v4(D2+4*rho)}, {v4(32+8*sg+4*rho)}, {v4(Z+8*ch+4*sg)}, {c}")
    vWA, vRA = 118, 119
    a(f"""
    v_mul_u32_u24 v{vWA}, 40, v{vB}
    v_mul_u32_u24 v{vRA}, 2560, v{vG}
    v_add_u32 v{vWA}, v{vWA}, v{vRA}
    s_lshl_b32 s{sT1}, s{sW}, 2
    s_add_u32 s{sT1}, s{sT1}, {LX1}
    v_add_u32 v{vWA}, s{sT1}, v{vWA}
    v_mul_u32_u24 v{vRA}, 160, v{vB}
    v_lshl_add_u32 v{vRA}, v{vG}, 3, v{vRA}
    s_mul_i32 s{sT2}, s{sW}, 2560
    s_add_u32 s{sT2}, s{sT2}, {LX1}
    v_add_u32 v{vRA}, s{sT2}, v{vRA}""")
    PK = 60
    for ch in range(2):
        for rho in range(2):
            d2 = 84+8*ch+4*rho
            for d0 in range(2):
                pkreg = PK+4*ch+2*rho+d0
                a(f"    v_cvt_pk_f16_f32 v{pkreg}, v{d2+2*d0}, v{d2+2*d0+1}")
                a(f"    ds_write_b32 v{vWA}, v{pkreg} offset:{640*ch+10240*rho+1280*d0}")
    a("    s_waitcnt lgkmcnt(0)")
    if st: st.mark(a)
    a("    s_barrier")
    for tau in range(4):
        a(f"    ds_read_b64 {v2(8+2*tau)}, v{vRA} offset:{40*tau}")
    vA = 120
    a(f"""
    s_mov_b32 s{sT1}, {2*A_JP}
    v_mul_lo_u32 v{vA}, v{vG}, s{sT1}
    v_lshrrev_b32 v122, 3, v{vB}
    v_lshlrev_b32 v122, 15, v122
    v_and_b32 v123, 7, v{vB}
    v_lshl_add_u32 v122, v123, 4, v122
    v_add_u32 v{vA}, v{vA}, v122
    s_lshl_b32 s{sA0}, s{sW}, 16
    s_lshl_b32 s{sT1}, s2, 7
    s_add_u32 s{sA0}, s{sA0}, s{sT1}
    s_add_u32 s{sA0}, s{sA0}, {WS_A}
    s_add_u32 s{sA1}, s{sA0}, {A_JP}
    s_add_u32 s{sAN}, s{sT1}, {WS_A+16*A_KP}
    v_mov_b32 v123, 0x00010001""")
    for tau in range(4):
        a(f"    s_waitcnt lgkmcnt({3-tau})")
        a(f"    v_mfma_f32_16x16x16_f16 {v4(16+4*tau)}, {v2(R8M)}, {v2(8+2*tau)}, 0")
    for e in range(2):
        for tau in range(4):
            a(f"    v_cvt_pk_f16_f32 v{32+4*e+tau}, v{16+4*tau+2*e}, v{16+4*tau+2*e+1}")
        for tau in range(4):
            a(f"    v_bfi_b32 v{32+4*e+tau}, v123, s{sTA+tau}, v{32+4*e+tau}")
        a(f"    buffer_store_dwordx4 {v4(32+4*e)}, v{vA}, {srd(R_WS)}, s{sA0 if e==0 else sA1} offen {FL}")
    lab = f"Lnyq_{len(a.lines)}"
    a(f"""
    s_cmp_lg_u32 s{sW}, 7
    s_cbranch_scc1 {lab}
    v_lshlrev_b32 v40, 3, v{vG}
    v_add_u32 v40, {LX1}, v40
    ds_read_b64 v[8:9], v40 offset:{512*40}
    s_waitcnt lgkmcnt(0)
    v_mfma_f32_16x16x16_f16 v[16:19], {v2(R8M)}, v[8:9], 0
    v_and_b32 v42, 8, v{vB}
    v_cmp_ne_u32 vcc, 0, v42
    v_cndmask_b32 v16, v16, v18, vcc
    v_cndmask_b32 v17, v17, v19, vcc
    v_cvt_pk_f16_f32 v20, v16, v17
    v_and_b32 v42, 7, v{vLane}
    v_cmp_eq_u32 vcc, 0, v42
    v_cndmask_b32 v20, 0, v20, vcc
    v_bfi_b32 v20, v123, s{sTA}, v20
    v_mov_b32 v21, s{sTA+1}
    v_mov_b32 v22, s{sTA+2}
    v_mov_b32 v23, s{sTA+3}
    v_lshrrev_b32 v43, 3, v{vLane}
    s_mov_b32 s{sT1}, {A_JP}
    v_mul_lo_u32 v43, v43, s{sT1}
    v_lshl_add_u32 v43, v42, 4, v43
    buffer_store_dwordx4 v[20:23], v43, {srd(R_WS)}, s{sAN} offen {FL}
{lab}:""")
    if st: st.mark(a)
def fft_p2(a, st, sleepA):
    first = 0
    p2.p2_read_tables(a, TAB, first)
    lab, done = "L_pollA", "L_pollA_done"
    a(f"    s_mov_b32 s{sPoll}, 0")
    a(f"""
    s_mul_i32 s{sIn}, s{sJP}, {A_JP}
    s_lshr_b32 s{sT0}, s{sKB}, 1
    s_lshl_b32 s{sT0}, s{sT0}, 15
    s_add_u32 s{sIn}, s{sIn}, s{sT0}
    s_and_b32 s{sT0}, s{sKB}, 1
    s_lshl_b32 s{sT0}, s{sT0}, 6
    s_add_u32 s{sIn}, s{sIn}, s{sT0}
    s_lshl_b32 s{sT0}, s{sW}, 12
    s_add_u32 s{sIn}, s{sIn}, s{sT0}
    s_add_u32 s{sIn}, s{sIn}, {WS_A}
    v_lshrrev_b32 v6, 2, v{vLane}
    v_lshlrev_b32 v6, 7, v6
    v_and_b32 v7, 3, v{vLane}
    v_lshl_add_u32 v3, v7, 4, v6
    v_mov_b32 v24, 0x00010001
{lab}:
    buffer_load_dwordx4 v[8:11], v3, {srd(R_WS)}, s{sIn} offen {FL}
    buffer_load_dwordx4 v[12:15], v3, {srd(R_WS)}, s{sIn} offen offset:2048 {FL}
    s_waitcnt vmcnt(0)""")
    for k in range(8): a(f"    v_xor_b32 v{16+k}, s{sTA+(k&3)}, v{8+k}")
    a("""
    v_or_b32 v16, v16, v17
    v_or_b32 v18, v18, v19
    v_or_b32 v20, v20, v21
    v_or_b32 v22, v22, v23
    v_or_b32 v16, v16, v18
    v_or_b32 v20, v20, v22
    v_or_b32 v16, v16, v20
    v_and_b32 v16, v24, v16
    v_cmp_ne_u32 vcc, 0, v16""")
    poll_tail(a, lab, done, sleepA)
    if st: st.mark(a)
    p2.p2_in_to_lds(a, LI)
    a("    s_waitcnt lgkmcnt(0)\n    s_barrier")
    p2.p2_compute(a, LI, LW, LO)
    if st: st.mark(a)
    p2.p2_out(a, LO, FL)
def fft_p3(a, st, sleepB, name):
    from p3 import XR, GP, R8I, sL0, sL1, sLN, sIdx, sRsel
    first = 0
    p3.p3_issue_x(a, XR)
    r8_matrix(a, R8I, True, 112)
    p3.p3_read_tables(a, TAB, first)
    a("    s_waitcnt vmcnt(0)")
    p3.p3_gate(a)
    if st: st.mark(a)
    a(f"""
    s_and_b32 s{sT0}, s2, 7
    s_lshl_b32 s{sT0}, s{sT0}, 7
    s_add_u32 s{sT5}, s{sT0}, {WS_IDX}
    v_mov_b32 v6, 0
    s_mov_b32 s{sPoll}, 0
L_pollI:
    buffer_load_dwordx2 v[16:17], v6, {srd(R_WS)}, s{sT5} offen {FL}
    s_waitcnt vmcnt(0)
    v_cmp_ne_u32 vcc, s{sNonce}, v17""")
    poll_tail(a, "L_pollI", "L_pollI_done", 4)
    a("    v_readfirstlane_b32 s94, v16")
    p3.key_decode(a, 94)
    a(f"""
    s_lshr_b32 s{sT0}, s2, 1
    s_mul_i32 s{sL0}, s{sT0}, {B_IP}
    s_and_b32 s{sT0}, s2, 1
    s_lshl_b32 s{sT0}, s{sT0}, 6
    s_add_u32 s{sL0}, s{sL0}, s{sT0}
    s_add_u32 s{sL0}, s{sL0}, {WS_B}
    s_add_u32 s{sLN}, s{sL0}, {32*128}
    s_lshl_b32 s{sT0}, s{sW}, 9
    s_add_u32 s{sL0}, s{sL0}, s{sT0}
    s_add_u32 s{sL1}, s{sL0}, {33*128}
    s_add_u32 s{sT5}, s{sLN}, {33*128}
    v_mul_u32_u24 v6, {2*33*128}, v{vG}
    v_lshrrev_b32 v7, 2, v{vB}
    v_lshl_add_u32 v7, v7, 7, v6
    v_and_b32 v3, 3, v{vB}
    v_lshl_add_u32 v7, v3, 4, v7
    v_mov_b32 v124, 0
    v_mov_b32 v125, 0
    s_mov_b32 s{sPoll}, 0
L_pollB:
    buffer_load_dwordx4 v[8:11], v7, {srd(R_WS)}, s{sL0} offen {FL}
    buffer_load_dwordx4 v[12:15], v7, {srd(R_WS)}, s{sL1} offen {FL}
    s_cmp_lg_u32 s{sW}, 7
    s_cbranch_scc1 L_pollB_nn
    buffer_load_dword v124, v6, {srd(R_WS)}, s{sLN} offen {FL}
    buffer_load_dword v125, v6, {srd(R_WS)}, s{sT5} offen {FL}
L_pollB_nn:
    s_waitcnt vmcnt(0)
    v_max3_u32 v16, v8, v9, v10
    v_max3_u32 v17, v11, v12, v13
    v_max3_u32 v18, v14, v15, v124
    v_max3_u32 v16, v16, v17, v18
    v_max_u32 v16, v16, v125
    v_cmp_eq_u32 vcc, -1, v16""")
    poll_tail(a, "L_pollB", "L_pollB_done", sleepB)
    if st: st.mark(a)
    p3.p3_r8(a, LX3, 8, 124)
    a("    s_waitcnt lgkmcnt(0)\n    s_barrier")
    a(f"""
    s_and_b32 s{sT0}, s{sIdx}, 255
    s_cmp_eq_u32 s{sT0}, s2
    s_cbranch_scc0 L_noown""")
    a(f"""
    v_and_b32 v6, 255, v0
    v_lshlrev_b32 v6, 4, v6
    v_lshrrev_b32 v7, 8, v0
    v_mul_u32_u24 v3, {7*4096}, v7
    v_add_u32 v3, v3, v6
    v_mov_b32 v16, 0xff
    s_mov_b32 s{sPoll}, 0
L_pollY:""")
    for m in range(7):
        a(f"    s_mov_b32 s{sT1}, {WS_Y + 4096*m}\n    buffer_load_dwordx4 {v4(80+4*m)}, v3, {srd(R_WS)}, s{sT1} offen {FL}")
    a(f"    s_waitcnt vmcnt(0)\n    v_mov_b32 v17, 0\n    v_mov_b32 v18, s{sTag8}")
    for k in range(28):
        a(f"    v_xor_b32 v19, v18, v{80+k}\n    v_or_b32 v17, v17, v19")
    a("    v_and_b32 v17, v16, v17\n    v_cmp_ne_u32 vcc, 0, v17")
    poll_tail(a, "L_pollY", "L_pollY_done", 4)
    for m in range(1,7):
        for k in range(4): a(f"    v_add_f32 v{80+k}, v{80+k}, v{80+4*m+k}")
    a(f"""
    v_lshl_add_u32 v6, v7, 12, v6
    ds_write_b128 v6, v[80:83] offset:{LY}
    s_waitcnt lgkmcnt(0)
    s_barrier
    s_cmp_eq_u32 s{sIdx}, s{sRowI}
    s_cbranch_scc0 L_noown""")
    p3.y_fetch(a, LY, 80)
    p3.p3_gate(a, 80)
    a(f"""
    v_mov_b32 v6, {WS_NONCE}
    v_mov_b32 v7, s{sNonce}
    s_mov_b64 exec, 1
    buffer_store_dword v7, v6, {srd(R_WS)}, 0 offen
    s_mov_b64 exec, -1
L_noown:""")
    p3.p3_rows(a, LX3, TAB, first)
    if st: st.mark(a)
    p3.p3_final(a)
sKQ, sFBK, sFB, sCB, sM = 83, 84, 85, 87, 3
def moe_role(a, st, name):
    from p3 import sIdx, sRsel
    a(f"""
    s_sub_u32 s{sM}, s2, 256
    s_and_b32 s{sKQ}, s{sM}, 3
    s_lshr_b32 s{sFBK}, s{sM}, 2
    s_lshr_b32 s{sFB}, s{sM}, 4
    s_and_b32 s{sCB}, s{sM}, 15
    s_cmp_eq_u32 s{sW}, 7
    s_cbranch_scc1 L_mctrl""")
    a(f"""
    v_lshrrev_b32 v6, 3, v{vLane}
    v_mul_u32_u24 v6, 7168, v6
    v_and_b32 v7, 7, v{vLane}
    v_bfe_u32 v3, v{vLane}, 4, 1
    v_lshlrev_b32 v3, 1, v3
    v_xor_b32 v7, v7, v3
    v_lshl_add_u32 v6, v7, 4, v6
    s_mul_i32 s{sT2}, s{sKQ}, {256*7168}
    s_lshl_b32 s{sT0}, s{sFBK}, 7
    s_add_u32 s{sT2}, s{sT2}, s{sT0}""")
    for (R, Lb) in ((R_G, M_LG), (R_U, M_LU)):
        for sl in range(5):
            lab = f"Lmd_{R}_{sl}"
            a(f"    s_add_u32 s{sT0}, s{sW}, {7*sl}")
            if sl == 4: a(f"    s_cmp_ge_u32 s{sT0}, 32\n    s_cbranch_scc1 {lab}")
            a(f"""
    s_and_b32 s{sT1}, s{sT0}, 1
    s_lshl_b32 s{sT1}, s{sT1}, 6
    v_xor_b32 v7, s{sT1}, v6
    s_lshl_b32 s{sT1}, s{sT0}, 10
    s_add_u32 m0, s{sT1}, {Lb}
    s_mul_i32 s{sT0}, s{sT0}, {8*7168}
    s_add_u32 s{sT0}, s{sT0}, s{sT2}
    buffer_load_dwordx4 v7, {srd(R)}, s{sT0} offen lds""")
            if sl == 4: a(f"{lab}:")
    def wdown():
        a(f"""
    s_lshl_b32 s{sT0}, s{sFB}, 8
    s_lshl_b32 s{sT1}, s{sW}, 5
    s_add_u32 s{sT0}, s{sT0}, s{sT1}
    s_lshl_b32 s{sT0}, s{sT0}, 11
    s_lshl_b32 s{sT1}, s{sCB}, 7
    s_add_u32 s{sT0}, s{sT0}, s{sT1}
    v_lshrrev_b32 v6, 3, v{vLane}
    v_lshlrev_b32 v6, 11, v6
    v_and_b32 v7, 7, v{vLane}
    v_lshl_add_u32 v6, v7, 4, v6""")
        for m in range(4):
            a(f"    s_add_u32 s{sT1}, s{sT0}, {8*2048*m}\n    buffer_load_dwordx4 {v4(100+4*m)}, v6, {srd(R_D)}, s{sT1} offen")
    wdown()
    a("    s_branch L_mjoin")
    a(f"""
L_mctrl:
    s_and_b32 s{sT0}, s{sM}, 7
    s_lshl_b32 s{sT0}, s{sT0}, 12
    s_add_u32 s{sT5}, s{sT0}, {WS_CANDR}
    s_mov_b32 s{sPoll}, 0
L_pollC:""")
    for q in range(4):
        a(f"    buffer_load_dwordx4 {v4(8+4*q)}, v{vL16}, {srd(R_WS)}, s{sT5} offen offset:{1024*q} {FL}")
    a(f"""
    s_waitcnt vmcnt(0)
    v_xor_b32 v24, s{sNonce}, v11
    v_xor_b32 v25, s{sNonce}, v15
    v_xor_b32 v26, s{sNonce}, v19
    v_xor_b32 v27, s{sNonce}, v23
    v_or_b32 v24, v24, v25
    v_or_b32 v26, v26, v27
    v_or_b32 v24, v24, v26
    v_cmp_ne_u32 vcc, 0, v24""")
    poll_tail(a, "L_pollC", "L_pollC_done", 6)
    a("""
    v_max3_u32 v24, v8, v12, v16
    v_max_u32 v24, v24, v20""")
    for m in ("row_shr:1 row_mask:0xf","row_shr:2 row_mask:0xf","row_shr:4 row_mask:0xf","row_shr:8 row_mask:0xf","row_bcast:15 row_mask:0xa","row_bcast:31 row_mask:0xc"):
        a(f"    v_max_u32_dpp v24, v24, v24 {m} bank_mask:0xf")
    a(f"""
    v_readlane_b32 s94, v24, 63
    v_cmp_eq_u32 vcc, s94, v12
    v_cndmask_b32 v9, v9, v13, vcc
    v_cndmask_b32 v10, v10, v14, vcc
    v_cndmask_b32 v8, v8, v12, vcc
    v_cmp_eq_u32 vcc, s94, v16
    v_cndmask_b32 v9, v9, v17, vcc
    v_cndmask_b32 v10, v10, v18, vcc
    v_cndmask_b32 v8, v8, v16, vcc
    v_cmp_eq_u32 vcc, s94, v20
    v_cndmask_b32 v9, v9, v21, vcc
    v_cndmask_b32 v10, v10, v22, vcc
    v_cndmask_b32 v8, v8, v20, vcc
    v_cmp_eq_u32 vcc, s94, v8
    s_ff1_i32_b64 s{sT2}, vcc
    v_readlane_b32 s{sT0}, v9, s{sT2}
    v_readlane_b32 s{sT1}, v10, s{sT2}
    v_mov_b32 v8, s94
    v_mov_b32 v9, s{sT0}
    v_mov_b32 v10, s{sT1}
    v_mov_b32 v11, s{sNonce}
    v_mov_b32 v6, {M_CTRL}
    s_mov_b64 exec, 1
    ds_write_b128 v6, v[8:11]
    s_mov_b64 exec, -1
    s_cmp_ge_u32 s{sM}, 8
    s_cbranch_scc1 L_nopub
    v_mov_b32 v9, s{sNonce}
    s_lshl_b32 s{sT0}, s{sM}, 7
    s_add_u32 s{sT0}, s{sT0}, {WS_IDX}
    v_mov_b32 v6, 0
    s_mov_b64 exec, 1
    buffer_store_dwordx2 v[8:9], v6, {srd(R_WS)}, s{sT0} offen {FL}
    s_mov_b64 exec, -1
L_nopub:""")
    wdown()
    a(f"""
L_mjoin:
    s_waitcnt lgkmcnt(0)
    s_barrier""")
    if st: st.mark(a)
    a(f"""
    v_mov_b32 v6, {M_CTRL}
    ds_read_b128 v[8:11], v6
    s_waitcnt lgkmcnt(0)
    v_readfirstlane_b32 s94, v8
    v_readfirstlane_b32 s{sMb}, v9
    v_readfirstlane_b32 s{sRs}, v10
    s_and_b32 s{sT0}, s94, 0x7ff
    s_sub_u32 s{sT0}, 2047, s{sT0}
    s_lshl_b32 s{sT0}, s{sT0}, 11
    s_lshl_b32 s{sT1}, s{sKQ}, 9
    s_add_u32 s{sT0}, s{sT0}, s{sT1}
    s_lshl_b32 s{sT1}, s{sW}, 6
    s_add_u32 s{sT0}, s{sT0}, s{sT1}
    v_lshlrev_b32 v6, 4, v{vG}
    buffer_load_dwordx4 v[8:11], v6, {srd(R_X)}, s{sT0} offen
    s_waitcnt vmcnt(0)""")
    for d in range(4):
        z0, z1 = 12+2*d, 13+2*d
        a(f"""
    v_lshlrev_b32 v{z0}, 16, v{8+d}
    v_and_b32 v{z1}, 0xffff0000, v{8+d}
    v_subrev_f32 v{z0}, s{sMb}, v{z0}
    v_subrev_f32 v{z1}, s{sMb}, v{z1}
    v_cvt_pk_bf16_f32 v{z0}, v{z0}, v{z1}
    v_and_b32 v{z1}, 0xffff0000, v{z0}
    v_lshlrev_b32 v{z0}, 16, v{z0}
    v_mul_f32 v{z0}, s{sRs}, v{z0}
    v_mul_f32 v{z1}, s{sRs}, v{z1}
    v_cvt_pk_bf16_f32 v{20+d}, v{z0}, v{z1}""")
    a("    s_barrier")
    if st: st.mark(a)
    a(f"""
    v_bfe_u32 v3, v{vLane}, 2, 2            ; r
    v_lshlrev_b32 v6, 3, v{vG}
    v_add_u32 v6, v6, v3
    v_lshlrev_b32 v6, 7, v6                 ; (8g+r)*128
    v_and_b32 v7, 3, v{vLane}
    v_lshl_add_u32 v6, v7, 3, v6            ; + 8c
    v_lshrrev_b32 v3, 1, v3                 ; r>>1
    v_and_b32 v7, 1, v{vG}
    v_lshl_add_u32 v3, v7, 1, v3            ; h
    v_lshl_add_u32 v6, v3, 5, v6
    s_lshl_b32 s{sT0}, s{sW}, 12
    v_add_u32 v6, s{sT0}, v6""")
    for ct in range(4):
        a(f"    v_xor_b32 v{24+ct}, {32*ct}, v6")
    for mat, Lb in enumerate((M_LG, M_LU)):
        for ct in range(4):
            b = 32+16*mat+4*ct
            a(f"    ds_read_b64_tr_b16 {v2(b)}, v{24+ct} offset:{Lb}")
            a(f"    ds_read_b64_tr_b16 {v2(b+2)}, v{24+ct} offset:{Lb+512}")
    for mat in range(2):
        a(f"    s_waitcnt lgkmcnt({8-8*mat})")
        for ct in range(4):
            a(f"    v_mfma_f32_16x16x32_bf16 {v4(64+16*mat+4*ct)}, v[20:23], {v4(32+16*mat+4*ct)}, 0")
    a(f"""
    v_lshlrev_b32 v6, 2, v{vB}
    s_lshl_b32 s{sT0}, s{sW}, 9
    s_add_u32 s{sT0}, s{sT0}, {M_RED}
    v_add_u32 v6, s{sT0}, v6
    s_mov_b64 exec, 0xffff""")
    for mat in range(2):
        for ct in range(4):
            a(f"    ds_write_b32 v6, v{64+16*mat+4*ct} offset:{256*mat+64*ct}")
    a(f"""
    s_mov_b64 exec, -1
    s_waitcnt lgkmcnt(0)
    s_barrier
    s_cmp_ge_u32 s{sW}, 2
    s_cbranch_scc1 L_mnopart
    v_lshlrev_b32 v6, 2, v{vLane}
    s_lshl_b32 s{sT0}, s{sW}, 8
    v_add_u32 v7, s{sT0}, v6""")
    for w in range(8): a(f"    ds_read_b32 v{8+w}, v7 offset:{M_RED+512*w}")
    a("    s_waitcnt lgkmcnt(0)")
    for w in range(1,8): a(f"    v_add_f32 v8, v8, v{8+w}")
    a(f"""
    v_mov_b32 v9, 0xff
    v_bfi_b32 v8, v9, s{sTag8}, v8
    s_lshl_b32 s{sT0}, s{sKQ}, 1
    s_add_u32 s{sT0}, s{sT0}, s{sW}
    s_mul_i32 s{sT0}, s{sT0}, {3584*4}
    s_lshl_b32 s{sT1}, s{sFBK}, 8
    s_add_u32 s{sT0}, s{sT0}, s{sT1}
    s_add_u32 s{sT0}, s{sT0}, {WS_PART}
    buffer_store_dword v8, v6, {srd(R_WS)}, s{sT0} offen {FL}
L_mnopart:""")
    if st: st.mark(a)
    a(f"""
    s_mul_i32 s{sT5}, s{sW}, {3584*4}
    s_lshl_b32 s{sT1}, s{sFB}, 10
    s_add_u32 s{sT5}, s{sT5}, s{sT1}
    s_add_u32 s{sT5}, s{sT5}, {WS_PART}
    v_mov_b32 v16, 0xff
    s_mov_b32 s{sPoll}, 0
L_pollP:
    buffer_load_dwordx4 v[8:11], v{vL16}, {srd(R_WS)}, s{sT5} offen {FL}
    s_waitcnt vmcnt(0)
    v_xor_b32 v12, s{sTag8}, v8
    v_xor_b32 v13, s{sTag8}, v9
    v_xor_b32 v14, s{sTag8}, v10
    v_xor_b32 v15, s{sTag8}, v11
    v_or_b32 v12, v12, v13
    v_or_b32 v14, v14, v15
    v_or_b32 v12, v12, v14
    v_and_b32 v12, v16, v12
    v_cmp_ne_u32 vcc, 0, v12""")
    poll_tail(a, "L_pollP", "L_pollP_done", 4)
    a(f"""
    s_lshl_b32 s{sT0}, s{sW}, 10
    s_add_u32 s{sT0}, s{sT0}, {M_SEG}
    v_add_u32 v6, s{sT0}, v{vL16}
    ds_write_b128 v6, v[8:11]
    s_waitcnt lgkmcnt(0)
    s_barrier
    s_cmp_ge_u32 s{sW}, 4
    s_cbranch_scc1 L_mnoh
    v_lshlrev_b32 v6, 2, v{vLane}
    s_lshl_b32 s{sT0}, s{sW}, 8
    v_add_u32 v6, s{sT0}, v6""")
    for q in range(8): a(f"    ds_read_b32 v{8+q}, v6 offset:{M_SEG+1024*q}")
    a(f"""
    s_waitcnt lgkmcnt(0)
    v_add_f32 v8, v8, v10
    v_add_f32 v9, v9, v11
    v_add_f32 v12, v12, v14
    v_add_f32 v13, v13, v15
    v_add_f32 v8, v8, v12
    v_add_f32 v16, v9, v13
    v_cvt_pk_bf16_f32 v8, v8, v16
    v_and_b32 v16, 0xffff0000, v8
    v_lshlrev_b32 v8, 16, v8
    s_mov_b32 s{sT0}, 0xbfb8aa3b""")
    p3.silu_pair(a, 8, 8, 9, 10, 11, sT0)
    a(f"""
    v_lshlrev_b32 v11, 16, v11
    v_mul_f32 v11, v11, v16
    v_cvt_pk_bf16_f32 v11, v11, v11
    v_lshlrev_b32 v11, 16, v11
    ds_write_b32 v6, v11 offset:{M_H}
L_mnoh:
    s_waitcnt lgkmcnt(0)
    s_barrier""")
    H = 24
    a(f"""
    v_lshrrev_b32 v6, 3, v{vLane}
    v_lshlrev_b32 v6, 2, v6
    s_lshl_b32 s{sT0}, s{sW}, 7
    v_add_u32 v6, s{sT0}, v6""")
    for m in range(4): a(f"    ds_read_b32 v{H+m}, v6 offset:{M_H+32*m}")
    a("    s_waitcnt lgkmcnt(0)")
    old = moe.WD2; moe.WD2 = 100
    moe.g2_compute(a, M_RED, H)
    moe.WD2 = old
    a(f"""
    s_waitcnt lgkmcnt(0)
    s_barrier
    s_cmp_lg_u32 s{sW}, 0
    s_cbranch_scc1 L_mend
    v_lshlrev_b32 v6, 2, v{vLane}""")
    for w in range(8): a(f"    ds_read_b32 v{8+w}, v6 offset:{M_RED+256*w}")
    a("    s_waitcnt lgkmcnt(0)")
    for w in range(1,8): a(f"    v_add_f32 v8, v8, v{8+w}")
    a(f"""
    v_mov_b32 v9, 0xff
    v_bfi_b32 v8, v9, s{sTag8}, v8
    s_lshl_b32 s{sT0}, s{sFB}, 12
    s_lshl_b32 s{sT1}, s{sCB}, 8
    s_add_u32 s{sT0}, s{sT0}, s{sT1}
    s_add_u32 s{sT0}, s{sT0}, {WS_Y}
    buffer_store_dword v8, v6, {srd(R_WS)}, s{sT0} offen {FL}
L_mend:""")
def kernel_mega(name, st=None, sleepA=8, sleepB=8):
    a = Asm()
    if st: st.mark(a)
    a(f"""
    s_cmp_ge_u32 s2, 488
    s_cbranch_scc1 {name}_end""")
    load_args(a); lane_setup(a); mk_table_srd(a, name)
    a(f"""
    s_mov_b32 s{sRole}, 0
    s_waitcnt lgkmcnt(0)
    s_load_dword s{sNonce}, s[24:25], {WS_NONCE}
    s_cmp_ge_u32 s2, 256
    s_cbranch_scc1 L_second""")
    mk_srd(a, R_X, S_X, 4194304); mk_srd(a, R_BW, S_BW, 2048)
    a(f"""
    s_lshl_b32 s{sRowI}, s{sW}, 8
    s_add_u32 s{sRowI}, s{sRowI}, s2
    s_lshl_b32 s{sRow}, s{sRowI}, 11
    v_lshlrev_b32 v{vXo}, 9, v{vG}
    v_lshl_add_u32 v{vXo}, v{vB}, 2, v{vXo}""")
    for q in range(8): a(f"    buffer_load_dword v{8+q}, v{vXo}, {srd(R_X)}, s{sRow} offen offset:{64*q}")
    dma_all_tables(a, (0,1))
    for q in range(8): a(f"    buffer_load_dword v{16+q}, v{vXo}, {srd(R_BW)}, 0 offen offset:{64*q}")
    mk_srd(a, R_WS, S_WS, WS_SIZE); mk_srd(a, R_WR, S_WR, 2101248); mk_srd(a, R_WI, S_WI, 2101248); mk_srd(a, R_OUT, S_OUT, 4194304)
    dma_all_tables(a, (2,3,4))
    p2.p2_ids(a)
    p2.p2_issue_w(a, 84, 92)
    clean_b(a)
    a("    s_waitcnt lgkmcnt(0)")
    derive_tags(a)
    fft_p1(a, st)
    a("L_p2entry:")
    fft_p2(a, st, sleepA)
    a(f"    s_cmp_eq_u32 s{sRole}, 1\n    s_cbranch_scc1 L_fin")
    fft_p3(a, st, sleepB, name)
    a("    s_branch L_fin")
    a("L_second:")
    mk_srd(a, R_WS, S_WS, WS_SIZE); mk_srd(a, R_X, S_X, 4194304)
    a(f"    s_cmp_ge_u32 s2, 480\n    s_cbranch_scc1 L_nyqtask")
    mk_srd(a, R_G, S_G, 1024*7168); mk_srd(a, R_U, S_U, 1024*7168); mk_srd(a, R_D, S_D, 3584*2048)
    a("    s_waitcnt lgkmcnt(0)")
    derive_tags(a)
    moe_role(a, None, name)
    a("    s_branch L_fin")
    a("L_nyqtask:")
    mk_srd(a, R_WR, S_WR, 2101248); mk_srd(a, R_WI, S_WI, 2101248); mk_srd(a, R_OUT, S_OUT, 4194304)
    a(f"    s_mov_b32 s{sRole}, 1\n    s_and_b32 s{sJP}, s2, 7\n    s_mov_b32 s{sKB}, 32")
    dma_all_tables(a, (0,1,2,3,4))
    p2.p2_issue_w(a, 84, 92)
    a("    s_waitcnt vmcnt(0) lgkmcnt(0)")
    derive_tags(a)
    p2.p2_w_to_lds(a, LW, 84, 92)
    a("    s_waitcnt lgkmcnt(0)\n    s_barrier\n    s_branch L_p2entry")
    a("L_fin:")
    if st: st.flush(a)
    a(f"{name}_end:\n    s_endpgm")
    return a, 128, LDS_BYTES
```

```python
from common import *
from p1 import sW,sT0,sT1,sT2,sT3,sT4,sT5,vLane,vL16,vG,vB,lane_setup
from p3 import argmax_keys, argmax_finish, key_decode, sIdx, sRsel, silu_pair
sF0, sMb2, sRs2 = 83, 87, 88
def ln_natural(a, X, xf, DB, acc, tmpv, sMb, sRs):
    a0,a1,a2,a3 = acc,acc+1,acc+2,acc+3
    u0,u1,u2 = tmpv,tmpv+1,tmpv+2
    a(f"    s_mov_b32 s{sT1}, 0x3f803f80\n    v_mov_b32 v{a0}, 0\n    v_mov_b32 v{a1}, 0")
    for q in range(8): a(f"    v_dot2c_f32_bf16 v{a0 + (q&1)}, s{sT1}, v{X+q}")
    a(f"    v_add_f32 v{a0}, v{a0}, v{a1}")
    unp=[]
    for q in range(8):
        unp.append(f"    v_lshlrev_b32 v{xf+2*q}, 16, v{X+q}")
        unp.append(f"    v_and_b32 v{xf+2*q+1}, 0xffff0000, v{X+q}")
    interleave(a, dpp_sum_steps(a0), unp, 2)
    a(f"""
    v_readlane_b32 s{sT2}, v{a0}, 63
    v_mov_b32 v{u0}, 0x3a800000
    v_mul_f32 v{u0}, s{sT2}, v{u0}
    v_cvt_pk_bf16_f32 v{u1}, v{u0}, v{u0}
    v_and_b32 v{u1}, 0xffff0000, v{u1}
    v_sub_f32 v{u0}, v{u0}, v{u1}""")
    for k in range(16): a(f"    v_sub_f32 v{xf+k}, v{xf+k}, v{u1}")
    for k in range(4): a(f"    v_mul_f32 v{acc+k}, v{xf+k}, v{xf+k}")
    for k in range(4,16): a(f"    v_fmac_f32 v{acc+(k&3)}, v{xf+k}, v{xf+k}")
    a(f"""
    v_add_f32 v{a0}, v{a0}, v{a1}
    v_add_f32 v{a2}, v{a2}, v{a3}
    v_add_f32 v{a0}, v{a0}, v{a2}""")
    fill=[]
    for q in range(8): fill.append(f"    v_cvt_pk_bf16_f32 v{DB+q}, v{xf+2*q}, v{xf+2*q+1}")
    for q in range(8):
        fill.append(f"    v_lshlrev_b32 v{xf+2*q}, 16, v{DB+q}")
        fill.append(f"    v_and_b32 v{xf+2*q+1}, 0xffff0000, v{DB+q}")
    interleave(a, dpp_sum_steps(a0), fill, 3)
    a(f"""
    v_readlane_b32 s{sT2}, v{a0}, 63
    v_mov_b32 v{u1}, 0x3a800000
    v_mul_f32 v{u1}, s{sT2}, v{u1}
    v_fma_f32 v{u1}, -v{u0}, v{u0}, v{u1}
    v_max_f32 v{u1}, 0, v{u1}
    v_cvt_pk_bf16_f32 v{u1}, v{u1}, v{u1}
    v_and_b32 v{u1}, 0xffff0000, v{u1}
    v_add_f32 v{u1}, 0x3727c5ac, v{u1}
    v_cvt_pk_bf16_f32 v{u1}, v{u1}, v{u1}
    v_and_b32 v{u1}, 0xffff0000, v{u1}
    v_sqrt_f32 v{u1}, v{u1}
    v_cvt_pk_bf16_f32 v{u1}, v{u1}, v{u1}
    v_and_b32 v{u1}, 0xffff0000, v{u1}
    v_rcp_f32 v{u2}, v{u1}""")
    for k in range(16): a(f"    v_mul_f32 v{xf+k}, v{u2}, v{xf+k}")
    for q in range(8): a(f"    v_cvt_pk_bf16_f32 v{DB+q}, v{xf+2*q}, v{xf+2*q+1}")
def g1_issue_weights(a, LG, LU, mreg="s2"):
    a(f"""
    s_and_b32 s{sT0}, {mreg}, 7
    s_mul_i32 s{sT0}, s{sT0}, 28
    s_lshr_b32 s{sT1}, {mreg}, 3
    s_add_u32 s{sF0}, s{sT0}, s{sT1}
    s_lshl_b32 s{sF0}, s{sF0}, 4            ; f0
    v_lshrrev_b32 v6, 1, v{vLane}
    v_mul_u32_u24 v6, 7168, v6
    v_and_b32 v7, 1, v{vLane}
    v_lshl_add_u32 v6, v7, 4, v6
    s_mul_i32 s{sT2}, s{sW}, {128*7168}
    s_lshl_b32 s{sT0}, s{sF0}, 1
    s_add_u32 s{sT2}, s{sT2}, s{sT0}
    s_lshl_b32 s{sT3}, s{sW}, 12""")
    for (R, Lb) in ((R_G, LG), (R_U, LU)):
        for m in range(4):
            a(f"""
    s_add_u32 m0, s{sT3}, {Lb+1024*m}
    s_add_u32 s{sT0}, s{sT2}, {32*7168*m}
    buffer_load_dwordx4 v6, {srd(R)}, s{sT0} offen lds""")
def g1_xsel(a, LXS):
    a(f"""
    s_lshl_b32 s{sT0}, s{sIdx}, 11
    v_lshlrev_b32 v6, 5, v{vLane}
    buffer_load_dwordx4 v[8:11], v6, {srd(R_X)}, s{sT0} offen
    buffer_load_dwordx4 v[12:15], v6, {srd(R_X)}, s{sT0} offen offset:16
    s_waitcnt vmcnt(0)""")
    ln_natural(a, 8, 32, 16, 48, 52, 0, 0)
    a(f"""
    v_lshlrev_b32 v6, 5, v{vLane}
    ds_write_b128 v6, v[16:19] offset:{LXS}
    ds_write_b128 v6, v[20:23] offset:{LXS+16}""")
def g1_compute(a, LG, LU, LXS, RED):
    a(f"""
    v_lshlrev_b32 v6, 4, v{vG}
    s_lshl_b32 s{sT0}, s{sW}, 8
    s_add_u32 s{sT0}, s{sT0}, {LXS}
    v_add_u32 v6, s{sT0}, v6
    v_lshlrev_b32 v7, 8, v{vG}
    v_bfe_u32 v3, v{vLane}, 2, 2
    v_lshl_add_u32 v7, v3, 5, v7
    v_and_b32 v3, 3, v{vLane}
    v_lshl_add_u32 v7, v3, 3, v7
    s_lshl_b32 s{sT0}, s{sW}, 12
    v_add_u32 v7, s{sT0}, v7""")
    for m in range(4): a(f"    ds_read_b128 {v4(8+4*m)}, v6 offset:{64*m}")
    for mat,(Lb) in enumerate((LG, LU)):
        for m in range(4):
            b = 24+16*mat+4*m
            a(f"    ds_read_b64_tr_b16 {v2(b)}, v7 offset:{Lb+1024*m}")
            a(f"    ds_read_b64_tr_b16 {v2(b+2)}, v7 offset:{Lb+1024*m+128}")
    for mat in range(2):
        a(f"    s_waitcnt lgkmcnt({8-8*mat})")
        for m in range(4):
            c = "0" if m == 0 else v4(56+4*mat)
            a(f"    v_mfma_f32_16x16x32_bf16 {v4(56+4*mat)}, {v4(8+4*m)}, {v4(24+16*mat+4*m)}, {c}")
    a(f"""
    v_lshlrev_b32 v6, 2, v{vB}
    s_lshl_b32 s{sT0}, s{sW}, 7
    s_add_u32 s{sT0}, s{sT0}, {RED}
    v_add_u32 v6, s{sT0}, v6
    v_cmp_gt_u32 vcc, 16, v{vLane}
    s_and_saveexec_b64 s[90:91], vcc
    ds_write_b32 v6, v56
    ds_write_b32 v6, v60 offset:64
    s_mov_b64 exec, s[90:91]""")
def g1_finish(a, RED, HDST=64):
    a(f"    v_lshlrev_b32 v6, 2, v{vB}")
    for w in range(8):
        a(f"    ds_read_b32 v{8+w}, v6 offset:{RED+128*w}\n    ds_read_b32 v{16+w}, v6 offset:{RED+128*w+64}")
    a("    s_waitcnt lgkmcnt(0)")
    for w in range(1,8): a(f"    v_add_f32 v8, v8, v{8+w}\n    v_add_f32 v16, v16, v{16+w}")
    a(f"""
    v_cvt_pk_bf16_f32 v8, v8, v16
    v_and_b32 v16, 0xffff0000, v8
    v_lshlrev_b32 v8, 16, v8
    s_mov_b32 s{sT0}, 0xbfb8aa3b""")
    silu_pair(a, 8, 8, 9, 10, 11, sT0)
    a(f"""
    v_lshlrev_b32 v11, 16, v11
    v_mul_f32 v11, v11, v16
    v_cvt_pk_bf16_f32 v11, v11, v11
    v_lshlrev_b32 v{HDST}, 16, v11""")
def kernel_m1(name, st=None):
    a = Asm()
    if st: st.mark(a)
    a(f"""
    s_cmp_ge_u32 s2, 224
    s_cbranch_scc1 {name}_end""")
    load_args(a); lane_setup(a)
    a("    s_waitcnt lgkmcnt(0)")
    mk_srd(a, R_WS, S_WS, WS_SIZE); mk_srd(a, R_X, S_X, 4194304)
    mk_srd(a, R_G, S_G, 1024*7168); mk_srd(a, R_U, S_U, 1024*7168)
    LXS, RED, LG, LU = 0, 2048, 4096, 4096+32768
    a(f"    s_mov_b32 s{sT5}, {WS_CAND}")
    argmax_keys(a, 90, 16)
    g1_issue_weights(a, LG, LU)
    a(f"""
    s_cmp_lg_u32 s{sW}, 0
    s_cbranch_scc1 {name}_nox
    s_waitcnt vmcnt(8)""")
    argmax_finish(a, 94, 16); key_decode(a, 94)
    g1_xsel(a, LXS)
    a(f"{name}_nox:\n    s_waitcnt vmcnt(0) lgkmcnt(0)")
    if st: st.mark(a)
    a("    s_waitcnt lgkmcnt(0)\n    s_barrier")
    g1_compute(a, LG, LU, LXS, RED)
    a(f"""
    s_waitcnt lgkmcnt(0)
    s_barrier
    s_cmp_lg_u32 s{sW}, 0
    s_cbranch_scc1 {name}_end""")
    g1_finish(a, RED)
    a(f"""
    v_lshlrev_b32 v6, 2, v{vB}
    s_lshl_b32 s{sT0}, s{sF0}, 2
    s_add_u32 s{sT0}, s{sT0}, {WS_H}
    v_cmp_gt_u32 vcc, 16, v{vLane}
    s_and_saveexec_b64 s[90:91], vcc
    buffer_store_dword v64, v6, {srd(R_WS)}, s{sT0} offen""")
    if st: st.flush(a)
    a(f"{name}_end:\n    s_endpgm")
    return a, 128, LU+32768
WD2 = 8
def g2_issue_weights(a, mreg="s2"):
    a(f"""
    s_lshr_b32 s{sT0}, {mreg}, 4
    s_mul_i32 s{sT0}, s{sT0}, 224
    s_lshl_b32 s{sT1}, s{sW}, 5
    s_add_u32 s{sF0}, s{sT0}, s{sT1}
    s_lshl_b32 s{sT0}, s{sF0}, 11
    s_and_b32 s{sT1}, {mreg}, 15
    s_lshl_b32 s{sT1}, s{sT1}, 7
    s_add_u32 s{sT0}, s{sT0}, s{sT1}
    v_lshrrev_b32 v6, 3, v{vLane}
    v_lshlrev_b32 v6, 11, v6
    v_and_b32 v7, 7, v{vLane}
    v_lshl_add_u32 v6, v7, 4, v6""")
    for m in range(4):
        a(f"    s_add_u32 s{sT1}, s{sT0}, {8*2048*m}\n    buffer_load_dwordx4 {v4(WD2+4*m)}, v6, {srd(R_D)}, s{sT1} offen")
def g2_issue_h(a, H=24, fl=""):
    a(f"""
    v_lshrrev_b32 v7, 3, v{vLane}
    v_lshlrev_b32 v7, 2, v7
    s_lshl_b32 s{sT0}, s{sF0}, 2
    s_add_u32 s{sT0}, s{sT0}, {WS_H}""")
    for m in range(4): a(f"    buffer_load_dword v{H+m}, v7, {srd(R_WS)}, s{sT0} offen offset:{32*m} {fl}")
def g2_compute(a, RED, H=24):
    ACC, T = 32, 40
    for m in range(4):
        for d in range(4):
            a(f"    v_lshlrev_b32 v{T}, 16, v{WD2+4*m+d}\n    v_and_b32 v{T+1}, 0xffff0000, v{WD2+4*m+d}")
            if m == 0:
                a(f"    v_mul_f32 v{ACC+2*d}, v{H}, v{T}\n    v_mul_f32 v{ACC+2*d+1}, v{H}, v{T+1}")
            else:
                a(f"    v_fmac_f32 v{ACC+2*d}, v{H+m}, v{T}\n    v_fmac_f32 v{ACC+2*d+1}, v{H+m}, v{T+1}")
    for k in range(4): a(f"    v_permlane32_swap_b32 v{ACC+k}, v{ACC+k+4}")
    for k in range(4): a(f"    v_add_f32 v{ACC+k}, v{ACC+k}, v{ACC+k+4}")
    for k in range(2): a(f"    v_permlane16_swap_b32 v{ACC+k}, v{ACC+k+2}")
    for k in range(2): a(f"    v_add_f32 v{ACC+k}, v{ACC+k}, v{ACC+k+2}")
    for k in range(2): a(f"    v_add_f32_dpp v{ACC+k}, v{ACC+k}, v{ACC+k} row_ror:8 row_mask:0xf bank_mask:0xf")
    a(f"""
    v_and_b32 v6, 7, v{vLane}
    v_lshlrev_b32 v6, 5, v6
    v_lshl_add_u32 v6, v{vG}, 3, v6
    s_lshl_b32 s{sT0}, s{sW}, 8
    s_add_u32 s{sT0}, s{sT0}, {RED}
    v_add_u32 v6, s{sT0}, v6
    ds_write_b64 v6, v[{ACC}:{ACC+1}]""")
def g2_finish(a, RED, mreg="s2", fl=""):
    a(f"    v_lshlrev_b32 v6, 2, v{vLane}")
    for w in range(7): a(f"    ds_read_b32 v{8+w}, v6 offset:{RED+256*w}")
    a("    s_waitcnt lgkmcnt(0)")
    for w in range(1,7): a(f"    v_add_f32 v8, v8, v{8+w}")
    a(f"""
    s_lshr_b32 s{sT0}, {mreg}, 4
    s_lshl_b32 s{sT0}, s{sT0}, 12
    s_and_b32 s{sT1}, {mreg}, 15
    s_lshl_b32 s{sT1}, s{sT1}, 8
    s_add_u32 s{sT0}, s{sT0}, s{sT1}
    s_add_u32 s{sT0}, s{sT0}, {WS_Y}
    buffer_store_dword v8, v6, {srd(R_WS)}, s{sT0} offen {fl}""")
def kernel_m2(name, st=None):
    a = Asm()
    if st: st.mark(a)
    a(f"""
    s_cmp_ge_u32 s2, 256
    s_cbranch_scc1 {name}_end""")
    load_args(a); lane_setup(a)
    a("    s_waitcnt lgkmcnt(0)")
    mk_srd(a, R_WS, S_WS, WS_SIZE); mk_srd(a, R_D, S_D, 3584*2048)
    RED = 0
    a(f"    s_cmp_eq_u32 s{sW}, 7\n    s_cbranch_scc1 {name}_skip")
    g2_issue_weights(a); g2_issue_h(a)
    a("    s_waitcnt vmcnt(0)")
    if st: st.mark(a)
    g2_compute(a, RED)
    a(f"{name}_skip:\n    s_waitcnt lgkmcnt(0)\n    s_barrier\n    s_cmp_lg_u32 s{sW}, 0\n    s_cbranch_scc1 {name}_end")
    g2_finish(a, RED)
    if st: st.flush(a)
    a(f"{name}_end:\n    s_endpgm")
    return a, 64, 2048
```

```python
from common import *
sW   = 68
sRow = 69
sT0,sT1,sT2,sT3,sT4,sT5 = 70,71,72,73,74,75
sA0, sA1, sAN = 76,77,78
sRowI = 79
sKey = 80
vLane, vL16, vXo, vG, vB = 1,2,3,4,5
def lane_setup(a):
    a(f"""
    v_and_b32 v{vLane}, 63, v0
    v_lshrrev_b32 v6, 6, v0
    v_lshlrev_b32 v{vL16}, 4, v{vLane}
    v_readfirstlane_b32 s{sW}, v6
    v_lshrrev_b32 v{vG}, 4, v{vLane}
    v_and_b32 v{vB}, 15, v{vLane}""")
def p1_issue_loads(a):
    a(f"""
    s_lshl_b32 s{sRowI}, s{sW}, 8
    s_add_u32 s{sRowI}, s{sRowI}, s2
    s_lshl_b32 s{sRow}, s{sRowI}, 11
    v_lshlrev_b32 v{vXo}, 9, v{vG}
    v_lshl_add_u32 v{vXo}, v{vB}, 2, v{vXo}""")
    for q in range(8):
        a(f"    buffer_load_dword v{8+q}, v{vXo}, {srd(R_X)}, s{sRow} offen offset:{64*q}")
    for q in range(8):
        a(f"    buffer_load_dword v{16+q}, v{vXo}, {srd(R_BW)}, 0 offen offset:{64*q}")
def dma_tables(a, first, count, lds_base):
    n = (count + 7)//8
    for m in range(n):
        lab = f"Ldma_{first}_{m}_{len(a.lines)}"
        full = (m+1)*8 <= count
        a(f"    s_add_u32 s{sT0}, s{sW}, {8*m}")
        if not full:
            a(f"    s_cmp_ge_u32 s{sT0}, {count}\n    s_cbranch_scc1 {lab}")
        a(f"""
    s_lshl_b32 s{sT0}, s{sT0}, 10
    s_add_u32 m0, s{sT0}, {lds_base}
    s_add_u32 s{sT0}, s{sT0}, {first*1024}
    buffer_load_dwordx4 v{vL16}, {srd(R_T)}, s{sT0} offen lds""")
        if not full: a(f"{lab}:")
def r8_matrix(a, dst, inverse, tmp):
    t0,t1,t2,t3,t4,t5 = range(tmp, tmp+6)
    a(f"""
    v_lshrrev_b32 v{t0}, 1, v{vB}          ; o = (lane&15)>>1
    v_and_b32 v{t1}, 1, v{vB}              ; oc
    v_cmp_eq_u32 vcc, 1, v{t1}""")
    for e in range(2):
        if not inverse:
            a(f"""
    v_lshlrev_b32 v{t2}, 9, v{vG}
    v_add_u32 v{t2}, s2, v{t2}
    v_add_u32 v{t2}, {256*e}, v{t2}
    v_mul_lo_u32 v{t2}, v{t2}, v{t0}""")
        else:
            a(f"""
    v_lshlrev_b32 v{t2}, 8, v{t0}
    v_add_u32 v{t2}, s2, v{t2}
    v_lshlrev_b32 v{t3}, 1, v{vG}
    v_add_u32 v{t3}, {e}, v{t3}
    v_mul_lo_u32 v{t2}, v{t2}, v{t3}""")
        a(f"""
    v_and_b32 v{t2}, 2047, v{t2}
    v_cvt_f32_u32 v{t2}, v{t2}
    v_mul_f32 v{t2}, 0x3a000000, v{t2}      ; /2048 -> revolutions
    v_cos_f32 v{t3}, v{t2}
    v_sin_f32 v{t4}, v{t2}""")
        if not inverse:
            a(f"""
    v_sub_f32 v{t5}, 0, v{t4}
    v_cndmask_b32 v{t5}, v{t3}, v{t5}, vcc
    v_cndmask_b32 v{t3}, v{t4}, v{t3}, vcc
    v_cvt_pk_f16_f32 v{dst+e}, v{t5}, v{t3}""")
        else:
            a(f"""
    v_sub_f32 v{t5}, 0, v{t4}
    v_cndmask_b32 v{t5}, v{t5}, v{t3}, vcc
    v_cndmask_b32 v{t3}, v{t3}, v{t4}, vcc
    v_cvt_pk_bf16_f32 v{dst+e}, v{t3}, v{t5}""")
def ln_stats(a, X, xf, DB, acc, sMb, sRs, tmpv):
    a0,a1,a2,a3 = acc,acc+1,acc+2,acc+3
    u0,u1,u2 = tmpv,tmpv+1,tmpv+2
    a(f"    s_mov_b32 s{sT1}, 0x3f803f80\n    v_mov_b32 v{a0}, 0\n    v_mov_b32 v{a1}, 0")
    for q in range(8):
        a(f"    v_dot2c_f32_bf16 v{a0 + (q&1)}, s{sT1}, v{X+q}")
    a(f"    v_add_f32 v{a0}, v{a0}, v{a1}")
    unp=[]
    for q in range(8):
        unp.append(f"    v_lshlrev_b32 v{xf+q}, 16, v{X+q}")
        unp.append(f"    v_and_b32 v{xf+8+q}, 0xffff0000, v{X+q}")
    interleave(a, dpp_sum_steps(a0), unp, 2)
    a(f"""
    v_readlane_b32 s{sT2}, v{a0}, 63
    v_mov_b32 v{u0}, 0x3a800000            ; 1/1024
    v_mul_f32 v{u0}, s{sT2}, v{u0}          ; mean
    v_cvt_pk_bf16_f32 v{u1}, v{u0}, v{u0}
    v_and_b32 v{u1}, 0xffff0000, v{u1}      ; m_bf
    v_sub_f32 v{u0}, v{u0}, v{u1}""")
    for k in range(16):
        a(f"    v_sub_f32 v{xf+k}, v{xf+k}, v{u1}")
    a(f"    v_readfirstlane_b32 s{sMb}, v{u1}")
    for k in range(4): a(f"    v_mul_f32 v{acc+k}, v{xf+k}, v{xf+k}")
    for k in range(4,16): a(f"    v_fmac_f32 v{acc+(k&3)}, v{xf+k}, v{xf+k}")
    a(f"""
    v_add_f32 v{a0}, v{a0}, v{a1}
    v_add_f32 v{a2}, v{a2}, v{a3}
    v_add_f32 v{a0}, v{a0}, v{a2}""")
    fill=[]
    for t in range(2):
        for p in range(4):
            fill.append(f"    v_cvt_pk_bf16_f32 v{DB+4*t+p}, v{xf+8*t+2*p}, v{xf+8*t+2*p+1}")
    for t in range(2):
        for p in range(4):
            fill.append(f"    v_lshlrev_b32 v{xf+8*t+2*p}, 16, v{DB+4*t+p}")
            fill.append(f"    v_and_b32 v{xf+8*t+2*p+1}, 0xffff0000, v{DB+4*t+p}")
    interleave(a, dpp_sum_steps(a0), fill, 3)
    a(f"""
    v_readlane_b32 s{sT2}, v{a0}, 63
    v_mov_b32 v{u1}, 0x3a800000
    v_mul_f32 v{u1}, s{sT2}, v{u1}          ; E[(x-m_bf)^2]
    v_fma_f32 v{u1}, -v{u0}, v{u0}, v{u1}   ; var
    v_max_f32 v{u1}, 0, v{u1}
    v_cvt_pk_bf16_f32 v{u1}, v{u1}, v{u1}
    v_and_b32 v{u1}, 0xffff0000, v{u1}
    v_add_f32 v{u1}, 0x3727c5ac, v{u1}      ; + 1e-5
    v_cvt_pk_bf16_f32 v{u1}, v{u1}, v{u1}
    v_and_b32 v{u1}, 0xffff0000, v{u1}
    v_sqrt_f32 v{u1}, v{u1}
    v_cvt_pk_bf16_f32 v{u1}, v{u1}, v{u1}
    v_and_b32 v{u1}, 0xffff0000, v{u1}
    v_rcp_f32 v{u2}, v{u1}
    v_readfirstlane_b32 s{sRs}, v{u2}""")
def p1_compute(a, TAB, LX, KEYS, st=None):
    X, WRr, WR, xf, acc, DB, XN, T1A, D = 8, 16, 24, 32, 48, 52, 60, 68, 84
    R8M = 116
    sMb, sRs = 81, 82
    r8_matrix(a, R8M, False, 118)
    a(f"    s_mov_b32 s{sT3}, 0x05040100\n    s_mov_b32 s{sT4}, 0x07060302")
    a("    s_waitcnt vmcnt(0)")
    if st: st.mark(a)
    a("    s_barrier")
    if st: st.mark(a)
    for ch in range(2):
        for oc in range(2):
            a(f"    ds_read_b128 {v4(T1A+8*ch+4*oc)}, v{vL16} offset:{TAB+BLK[('1A',ch,oc)]*1024}")
    for p in range(4):
        a(f"    v_perm_b32 v{WR+p}, v{WRr+2*p+1}, v{WRr+2*p}, s{sT3}")
        a(f"    v_perm_b32 v{WR+4+p}, v{WRr+2*p+1}, v{WRr+2*p}, s{sT4}")
    ln_stats(a, X, xf, DB, acc, sMb, sRs, 56+0 if False else 124)
    for k in range(16): a(f"    v_mul_f32 v{xf+k}, s{sRs}, v{xf+k}")
    for t in range(2):
        for p in range(4):
            a(f"    v_cvt_pk_bf16_f32 v{XN+4*t+p}, v{xf+8*t+2*p}, v{xf+8*t+2*p+1}")
    if st: st.mark(a)
    for ch in range(2):
        for t in range(2):
            a(f"    ds_read_b128 {v4(8+8*ch+4*t)}, v{vL16} offset:{TAB+BLK[('1W',ch,t)]*1024}")
    a("    s_waitcnt lgkmcnt(4)")
    for ch in range(2):
        for t in range(2):
            for oc in range(2):
                a(f"    v_mfma_f32_16x16x32_bf16 {v4(D+16*ch+8*t+4*oc)}, {v4(XN+4*t)}, {v4(T1A+8*ch+4*oc)}, 0")
    for sg in range(2):
        for rho in range(2):
            a(f"    ds_read_b128 {v4(32+8*sg+4*rho)}, v{vL16} offset:{TAB+BLK[('1B',sg,rho)]*1024}")
    a(f"    s_mov_b32 s{sT1}, 0x3f803f80\n    s_mov_b32 s{sT5}, 0xbf80bf80\n    v_mov_b32 v{acc}, 0\n    v_mov_b32 v{acc+1}, 0")
    for t in range(2):
        for p in range(4):
            a(f"    v_dot2c_f32_bf16 v{acc}, v{WR+4*t+p}, v{XN+4*t+p}")
            a(f"    v_dot2c_f32_bf16 v{acc+1}, s{sT1 if t==0 else sT5}, v{XN+4*t+p}")
    for s0,s1 in zip(dpp_sum_steps(acc), dpp_sum_steps(acc+1)):
        a(s0); a(s1)
    a(f"""
    v_readlane_b32 s{sT1}, v{acc}, 63
    v_readlane_b32 s{sT2}, v{acc+1}, 63
    v_cvt_pk_bf16_f32 v{acc+2}, s{sT1}, s{sT1}
    v_mul_f32 v{acc+3}, s{sT2}, 0.25""".replace("v_mul_f32 v%d, s%d, 0.25"%(acc+3,sT2), "v_mov_b32 v%d, 0x3e800000\n    v_mul_f32 v%d, s%d, v%d"%(acc+3,acc+3,sT2,acc+3)))
    a(f"""
    v_readfirstlane_b32 s{sT1}, v{acc+2}
    v_cvt_pk_f16_f32 v{acc+3}, v{acc+3}, 0
    s_and_b32 s{sT1}, s{sT1}, 0xffff
    s_or_b32 s{sT2}, s{sT1}, 0x8000
    s_xor_b32 s{sT5}, s{sT1}, 0xffff
    s_bitcmp1_b32 s{sT1}, 15
    s_cselect_b32 s{sT1}, s{sT5}, s{sT2}
    s_lshl_b32 s{sT1}, s{sT1}, 16
    s_sub_u32 s{sT2}, 2047, s{sRowI}
    s_or_b32 s{sKey}, s{sT1}, s{sT2}""")
    a("    s_waitcnt lgkmcnt(0)")
    Z = 68
    for ch in range(2):
        for t in range(2):
            for r in range(4):
                z = Z+8*ch+4*t+r; tw = 8+8*ch+4*t+r
                a(f"    v_cvt_pk_f16_f32 v{z}, v{D+16*ch+8*t+r}, v{D+16*ch+8*t+4+r}")
        for t in range(2):
            for r in range(4):
                z = Z+8*ch+4*t+r; tw = 8+8*ch+4*t+r; tmp = D+16*ch+8*t+r
                a(f"    v_pk_mul_f16 v{tmp}, v{z}, v{tw} op_sel:[0,0] op_sel_hi:[0,1]")
        for t in range(2):
            for r in range(4):
                z = Z+8*ch+4*t+r; tw = 8+8*ch+4*t+r; tmp = D+16*ch+8*t+r
                a(f"    v_pk_fma_f16 v{z}, v{z}, v{tw}, v{tmp} op_sel:[1,1,0] op_sel_hi:[1,0,1] neg_lo:[0,1,0]")
        D2 = 84 + 8*ch if ch == 0 else 92
        for sg in range(2):
            for rho in range(2):
                c = "0" if sg == 0 else v4(D2+4*rho)
                a(f"    v_mfma_f32_16x16x32_f16 {v4(D2+4*rho)}, {v4(32+8*sg+4*rho)}, {v4(Z+8*ch+4*sg)}, {c}")
    vWA, vRA = 118, 119
    a(f"""
    v_mul_u32_u24 v{vWA}, 40, v{vB}
    v_mul_u32_u24 v{vRA}, 2560, v{vG}
    v_add_u32 v{vWA}, v{vWA}, v{vRA}
    s_lshl_b32 s{sT1}, s{sW}, 2
    s_add_u32 s{sT1}, s{sT1}, {LX}
    v_add_u32 v{vWA}, s{sT1}, v{vWA}
    v_mul_u32_u24 v{vRA}, 160, v{vB}
    v_lshl_add_u32 v{vRA}, v{vG}, 3, v{vRA}
    s_mul_i32 s{sT2}, s{sW}, 2560
    s_add_u32 s{sT2}, s{sT2}, {LX}
    v_add_u32 v{vRA}, s{sT2}, v{vRA}""")
    PK = 60
    for ch in range(2):
        for rho in range(2):
            d2 = 84+8*ch+4*rho
            for d0 in range(2):
                pkreg = PK+4*ch+2*rho+d0
                a(f"    v_cvt_pk_f16_f32 v{pkreg}, v{d2+2*d0}, v{d2+2*d0+1}")
                a(f"    ds_write_b32 v{vWA}, v{pkreg} offset:{640*ch+10240*rho+1280*d0}")
    a(f"""
    s_mov_b64 exec, 1
    v_mov_b32 v120, s{sT1}
    ds_write_b32 v120, v{acc+3} offset:{512*40}
    s_lshl_b32 s{sT2}, s{sW}, 2
    s_add_u32 s{sT2}, s{sT2}, {KEYS}
    v_mov_b32 v121, s{sT2}
    v_mov_b32 v122, s{sKey}
    ds_write_b32 v121, v122
    s_lshl_b32 s{sT2}, s{sRowI}, 3
    s_add_u32 s{sT2}, s{sT2}, {WS_ST}
    v_mov_b32 v121, s{sT2}
    v_mov_b32 v122, s{sMb}
    v_mov_b32 v123, s{sRs}
    buffer_store_dwordx2 v[122:123], v121, {srd(R_WS)}, 0 offen
    s_mov_b64 exec, -1
    s_waitcnt lgkmcnt(0)""")
    if st: st.mark(a)
    a("    s_barrier")
    if st: st.mark(a)
    for tau in range(4):
        a(f"    ds_read_b64 {v2(8+2*tau)}, v{vRA} offset:{40*tau}")
    vA, vN = 120, 121
    a(f"""
    s_mov_b32 s{sT1}, {2*A_JP}
    v_mul_lo_u32 v{vA}, v{vG}, s{sT1}
    v_lshrrev_b32 v122, 3, v{vB}
    v_lshlrev_b32 v122, 15, v122           ; (col>>3)*A_KP
    v_and_b32 v123, 7, v{vB}
    v_lshl_add_u32 v122, v123, 4, v122
    v_add_u32 v{vA}, v{vA}, v122
    s_lshl_b32 s{sA0}, s{sW}, 16           ; 2w*A_KP
    s_lshl_b32 s{sT1}, s2, 7
    s_add_u32 s{sA0}, s{sA0}, s{sT1}
    s_add_u32 s{sA0}, s{sA0}, {WS_A}
    s_add_u32 s{sA1}, s{sA0}, {A_JP}
    s_add_u32 s{sAN}, s{sT1}, {WS_A+16*A_KP}""")
    for tau in range(4):
        a(f"    s_waitcnt lgkmcnt({3-tau})")
        a(f"    v_mfma_f32_16x16x16_f16 {v4(16+4*tau)}, {v2(R8M)}, {v2(8+2*tau)}, 0")
    for e in range(2):
        for tau in range(4):
            a(f"    v_cvt_pk_f16_f32 v{32+4*e+tau}, v{16+4*tau+2*e}, v{16+4*tau+2*e+1}")
    return vA
def p1_store(a, vA, fl=""):
    a(f"    buffer_store_dwordx4 {v4(32)}, v{vA}, {srd(R_WS)}, s{sA0} offen {fl}")
    a(f"    buffer_store_dwordx4 {v4(36)}, v{vA}, {srd(R_WS)}, s{sA1} offen {fl}")
def p1_nyq_and_key(a, LX, KEYS, R8M=116, fl=""):
    lab = f"Lnyq_{len(a.lines)}"
    a(f"""
    s_cmp_lg_u32 s{sW}, 7
    s_cbranch_scc1 {lab}
    v_lshlrev_b32 v40, 3, v{vG}
    v_add_u32 v40, {LX}, v40
    ds_read_b64 v[8:9], v40 offset:{512*40}
    v_mov_b32 v41, {KEYS}
    ds_read_b128 v[44:47], v41
    ds_read_b128 v[48:51], v41 offset:16
    s_waitcnt lgkmcnt(2)
    v_mfma_f32_16x16x16_f16 v[16:19], {v2(R8M)}, v[8:9], 0
    v_and_b32 v42, 8, v{vB}
    v_cmp_ne_u32 vcc, 0, v42
    v_cndmask_b32 v16, v16, v18, vcc
    v_cndmask_b32 v17, v17, v19, vcc
    v_cvt_pk_f16_f32 v20, v16, v17
    v_and_b32 v42, 7, v{vLane}
    v_cmp_eq_u32 vcc, 0, v42
    v_cndmask_b32 v20, 0, v20, vcc
    v_mov_b32 v21, 0
    v_mov_b32 v22, 0
    v_mov_b32 v23, 0
    v_lshrrev_b32 v43, 3, v{vLane}
    s_mov_b32 s{sT1}, {A_JP}
    v_mul_lo_u32 v43, v43, s{sT1}
    v_lshl_add_u32 v43, v42, 4, v43
    buffer_store_dwordx4 v[20:23], v43, {srd(R_WS)}, s{sAN} offen {fl}
    s_waitcnt lgkmcnt(0)
    v_max3_u32 v44, v44, v45, v46
    v_max3_u32 v47, v47, v48, v49
    v_max3_u32 v44, v44, v50, v51
    v_max_u32 v44, v44, v47
    s_lshl_b32 s{sT1}, s2, 2
    s_add_u32 s{sT1}, s{sT1}, {WS_CAND}
    v_mov_b32 v45, s{sT1}
    s_mov_b64 exec, 1
    buffer_store_dword v44, v45, {srd(R_WS)}, 0 offen {fl}
    s_mov_b64 exec, -1
{lab}:""")
def kernel_p1(name, st=None):
    a = Asm()
    if st: st.mark(a)
    a(f"""
    s_cmp_ge_u32 s2, 256
    s_cbranch_scc1 {name}_end""")
    load_args(a); lane_setup(a)
    mk_table_srd(a, name)
    a("    s_waitcnt lgkmcnt(0)")
    mk_srd(a, R_X, S_X, 4194304); mk_srd(a, R_BW, S_BW, 2048); mk_srd(a, R_WS, S_WS, WS_SIZE)
    p1_issue_loads(a)
    first = BLK[("1A",0,0)]
    TAB, LX, KEYS = -first*1024, 12288, 12288+20544
    dma_tables(a, first, 12, 0)
    vA = p1_compute(a, TAB, LX, KEYS, st)
    if st: st.mark(a)
    p1_store(a, vA)
    p1_nyq_and_key(a, LX, KEYS)
    if st: st.flush(a)
    a(f"{name}_end:\n    s_endpgm")
    return a, 128, 12288+20544+64
```

```python
from common import *
from p1 import sW,sT0,sT1,sT2,sT3,sT4,sT5,vLane,vL16,vG,vB,lane_setup,dma_tables
sJP, sKB, sIn, sWo, sSh, sB0, sB1 = 83,84,85,86,87,88,89
def p2_ids(a, idreg="s2"):
    a(f"""
    s_and_b32 s{sJP}, {idreg}, 7
    s_lshr_b32 s{sKB}, {idreg}, 3""")
def p2_issue_w(a, W0=16, W1=24):
    a(f"""
    s_mul_i32 s{sWo}, s{sJP}, 1026
    s_lshl_b32 s{sT0}, s{sKB}, 5
    s_add_u32 s{sWo}, s{sWo}, s{sT0}
    s_and_b32 s{sT0}, s{sJP}, 1
    s_lshl_b32 s{sSh}, s{sT0}, 4
    s_lshl_b32 s{sT0}, s{sT0}, 1
    s_sub_u32 s{sWo}, s{sWo}, s{sT0}
    v_lshrrev_b32 v6, 1, v0
    v_mul_u32_u24 v6, 8208, v6
    v_and_b32 v7, 1, v0
    v_lshl_add_u32 v6, v7, 4, v6
    buffer_load_dwordx4 {v4(W0)}, v6, {srd(R_WR)}, s{sWo} offen
    buffer_load_dword v{W0+4}, v6, {srd(R_WR)}, s{sWo} offen offset:16
    buffer_load_dwordx4 {v4(W1)}, v6, {srd(R_WI)}, s{sWo} offen
    buffer_load_dword v{W1+4}, v6, {srd(R_WI)}, s{sWo} offen offset:16""")
def p2_w_to_lds(a, LW, W0=16, W1=24):
    for W in (W0, W1):
        for m in range(4):
            a(f"    v_alignbit_b32 v{W+m}, v{W+m+1}, v{W+m}, s{sSh}")
    a(f"""
    v_lshrrev_b32 v6, 1, v0
    v_mul_u32_u24 v6, 80, v6
    v_and_b32 v7, 1, v0
    v_lshl_add_u32 v6, v7, 4, v6
    ds_write_b128 v6, {v4(W0)} offset:{LW}
    ds_write_b128 v6, {v4(W1)} offset:{LW+32}""")
def p2_issue_in(a, IN=8, fl=""):
    a(f"""
    s_mul_i32 s{sIn}, s{sJP}, {A_JP}
    s_lshr_b32 s{sT0}, s{sKB}, 1
    s_lshl_b32 s{sT0}, s{sT0}, 15
    s_add_u32 s{sIn}, s{sIn}, s{sT0}
    s_and_b32 s{sT0}, s{sKB}, 1
    s_lshl_b32 s{sT0}, s{sT0}, 6
    s_add_u32 s{sIn}, s{sIn}, s{sT0}
    s_lshl_b32 s{sT0}, s{sW}, 12
    s_add_u32 s{sIn}, s{sIn}, s{sT0}
    s_add_u32 s{sIn}, s{sIn}, {WS_A}
    v_lshrrev_b32 v6, 2, v{vLane}
    v_lshlrev_b32 v6, 7, v6
    v_and_b32 v7, 3, v{vLane}
    v_lshl_add_u32 v3, v7, 4, v6
    buffer_load_dwordx4 {v4(IN)}, v3, {srd(R_WS)}, s{sIn} offen {fl}
    buffer_load_dwordx4 {v4(IN+4)}, v3, {srd(R_WS)}, s{sIn} offen offset:2048 {fl}""")
def p2_in_to_lds(a, LI, IN=8):
    a(f"""
    v_lshrrev_b32 v6, 2, v{vLane}
    v_lshlrev_b32 v6, 4, v6
    v_and_b32 v7, 3, v{vLane}
    v_mul_u32_u24 v7, 4128, v7
    v_add_u32 v6, v6, v7
    s_lshl_b32 s{sT0}, s{sW}, 9
    s_add_u32 s{sT0}, s{sT0}, {LI}
    v_add_u32 v6, s{sT0}, v6
    ds_write_b128 v6, {v4(IN)}
    ds_write_b128 v6, {v4(IN+4)} offset:256""")
T2A,T2W,T2B,T2C,T2V,T2D = 32,40,44,52,60,64
def p2_read_tables(a, TAB, first):
    o = lambda k: TAB + (BLK[k]-first)*1024
    for oc in range(2): a(f"    ds_read_b128 {v4(T2A+4*oc)}, v{vL16} offset:{o(('2A',oc))}")
    a(f"    ds_read_b128 {v4(T2W)}, v{vL16} offset:{o(('2W',))}")
    for r in range(2): a(f"    ds_read_b128 {v4(T2B+4*r)}, v{vL16} offset:{o(('2B',r))}")
    for oc in range(2): a(f"    ds_read_b128 {v4(T2C+4*oc)}, v{vL16} offset:{o(('2C',oc))}")
    a(f"    ds_read_b128 {v4(T2V)}, v{vL16} offset:{o(('2V',))}")
    for r in range(2): a(f"    ds_read_b128 {v4(T2D+4*r)}, v{vL16} offset:{o(('2D',r))}")
def p2_compute(a, LI, LW, LO):
    U, D, Z, WD = 72, 80, 96, 104
    a(f"""
    v_lshlrev_b32 v6, 10, v{vG}
    v_lshl_add_u32 v6, v{vB}, 4, v6
    s_lshr_b32 s{sT0}, s{sW}, 1
    s_mul_i32 s{sT0}, s{sT0}, 4128
    s_and_b32 s{sT1}, s{sW}, 1
    s_lshl_b32 s{sT1}, s{sT1}, 3
    s_add_u32 s{sT0}, s{sT0}, s{sT1}
    s_add_u32 s{sT0}, s{sT0}, {LI}
    v_add_u32 v6, s{sT0}, v6""")
    for t in range(4): a(f"    ds_read_b64 {v2(U+2*t)}, v6 offset:{256*t}")
    a(f"""
    v_mul_u32_u24 v7, 80, v{vB}
    v_mul_u32_u24 v3, 5120, v{vG}
    v_add_u32 v7, v7, v3
    s_lshl_b32 s{sT0}, s{sW}, 2
    s_add_u32 s{sT1}, s{sT0}, {LW}
    v_add_u32 v3, s{sT1}, v7
    s_lshl_b32 s{sT0}, s{sW}, 3
    s_add_u32 s{sT0}, s{sT0}, {LO}
    v_add_u32 v7, s{sT0}, v7""")
    for t in range(4):
        a(f"    ds_read_b32 v{WD+2*t}, v3 offset:{1280*t}")
        a(f"    ds_read_b32 v{WD+2*t+1}, v3 offset:{1280*t+32}")
    a("    s_waitcnt lgkmcnt(8)")
    a(f"""
    v_swap_b32 v{U+1}, v{U+2}
    v_swap_b32 v{U+3}, v{U+6}
    v_swap_b32 v{U+2}, v{U+4}
    v_swap_b32 v{U+6}, v{U+5}""")
    for u in range(2):
        for oc in range(2):
            a(f"    v_mfma_f32_16x16x32_f16 {v4(D+8*u+4*oc)}, {v4(U+4*u)}, {v4(T2A+4*oc)}, 0")
    for u in range(2):
        for r in range(4): a(f"    v_cvt_pk_f16_f32 v{Z+4*u+r}, v{D+8*u+r}, v{D+8*u+4+r}")
        for r in range(4): a(f"    v_pk_mul_f16 v{D+8*u+r}, v{Z+4*u+r}, v{T2W+r} op_sel:[0,0] op_sel_hi:[0,1]")
        for r in range(4): a(f"    v_pk_fma_f16 v{Z+4*u+r}, v{Z+4*u+r}, v{T2W+r}, v{D+8*u+r} op_sel:[1,1,0] op_sel_hi:[1,0,1] neg_lo:[0,1,0]")
        for rho in range(2):
            a(f"    v_mfma_f32_16x16x32_f16 {v4(D+8*u+4*rho)}, {v4(T2B+4*rho)}, {v4(Z+4*u)}, 0")
    a("    s_waitcnt lgkmcnt(0)")
    WF = 112
    for t in range(4):
        a(f"    v_lshlrev_b32 v{WF+4*t+0}, 16, v{WD+2*t}")
        a(f"    v_lshlrev_b32 v{WF+4*t+1}, 16, v{WD+2*t+1}")
        a(f"    v_and_b32 v{WF+4*t+2}, 0xffff0000, v{WD+2*t}")
        a(f"    v_and_b32 v{WF+4*t+3}, 0xffff0000, v{WD+2*t+1}")
    Y = 96; TM = 104; D3 = 8
    for u in range(2):
        for rho in range(2):
            for d0 in range(2):
                t = 2*rho+d0; xr = D+8*u+4*rho+2*d0; xi = xr+1; wr = WF+4*t+2*u; wi = wr+1
                a(f"    v_mul_f32 v{TM+2*t}, v{xr}, v{wr}")
                a(f"    v_mul_f32 v{TM+2*t+1}, v{xr}, v{wi}")
        for rho in range(2):
            for d0 in range(2):
                t = 2*rho+d0; xr = D+8*u+4*rho+2*d0; xi = xr+1; wr = WF+4*t+2*u; wi = wr+1
                a(f"    v_fma_f32 v{TM+2*t}, -v{xi}, v{wi}, v{TM+2*t}")
                a(f"    v_fma_f32 v{TM+2*t+1}, v{xi}, v{wr}, v{TM+2*t+1}")
        for t in range(4): a(f"    v_cvt_pk_bf16_f32 v{Y+4*u+t}, v{TM+2*t}, v{TM+2*t+1}")
        for oc in range(2):
            a(f"    v_mfma_f32_16x16x32_bf16 {v4(D3+8*u+4*oc)}, {v4(Y+4*u)}, {v4(T2C+4*oc)}, 0")
    Z2 = 72
    for u in range(2):
        for r in range(4):
            gr = D3+8*u+r; gi = gr+4
            a(f"    v_fma_mix_f32 v{TM+2*r}, v{gr}, v{T2V+r}, 0 op_sel:[0,0,0] op_sel_hi:[0,1,0]")
            a(f"    v_fma_mix_f32 v{TM+2*r+1}, v{gr}, v{T2V+r}, 0 op_sel:[0,1,0] op_sel_hi:[0,1,0]")
        for r in range(4):
            gr = D3+8*u+r; gi = gr+4
            a(f"    v_fma_mix_f32 v{TM+2*r}, -v{gi}, v{T2V+r}, v{TM+2*r} op_sel:[0,1,0] op_sel_hi:[0,1,0]")
            a(f"    v_fma_mix_f32 v{TM+2*r+1}, v{gi}, v{T2V+r}, v{TM+2*r+1} op_sel:[0,0,0] op_sel_hi:[0,1,0]")
        for r in range(4): a(f"    v_cvt_pk_bf16_f32 v{Z2+4*u+r}, v{TM+2*r}, v{TM+2*r+1}")
        for rho in range(2):
            a(f"    v_mfma_f32_16x16x32_bf16 {v4(D+8*u+4*rho)}, {v4(T2D+4*rho)}, {v4(Z2+4*u)}, 0")
    V = 96
    for u in range(2):
        for rho in range(2):
            for f0 in range(2):
                t = 2*rho+f0
                a(f"    v_cvt_pk_bf16_f32 v{V+2*t+u}, v{D+8*u+4*rho+2*f0}, v{D+8*u+4*rho+2*f0+1}")
    for t in range(4): a(f"    ds_write_b64 v7, {v2(V+2*t)} offset:{1280*t}")
def p2_out(a, LO, fl=""):
    a(f"""
    v_lshrrev_b32 v6, 2, v{vLane}
    v_mul_u32_u24 v6, 80, v6
    v_and_b32 v7, 3, v{vLane}
    v_lshl_add_u32 v6, v7, 4, v6
    s_mul_i32 s{sT0}, s{sW}, 2560
    s_add_u32 s{sT0}, s{sT0}, {LO}
    v_add_u32 v6, s{sT0}, v6
    v_lshrrev_b32 v3, 3, v{vLane}
    s_mov_b32 s{sT1}, {B_IP}
    v_mul_lo_u32 v3, v3, s{sT1}
    v_and_b32 v7, 7, v{vLane}
    v_lshl_add_u32 v3, v7, 4, v3
    s_mul_i32 s{sB0}, s{sJP}, 33
    s_add_u32 s{sB0}, s{sB0}, s{sKB}
    s_lshl_b32 s{sB0}, s{sB0}, 7
    s_mul_i32 s{sT0}, s{sW}, {16*B_IP}
    s_add_u32 s{sB0}, s{sB0}, s{sT0}
    s_add_u32 s{sB0}, s{sB0}, {WS_B}
    s_add_u32 s{sB1}, s{sB0}, {8*B_IP}
    s_waitcnt lgkmcnt(0)
    s_barrier
    ds_read_b128 v[8:11], v6
    ds_read_b128 v[12:15], v6 offset:1280
    s_waitcnt lgkmcnt(1)
    buffer_store_dwordx4 v[8:11], v3, {srd(R_WS)}, s{sB0} offen {fl}
    s_waitcnt lgkmcnt(0)
    buffer_store_dwordx4 v[12:15], v3, {srd(R_WS)}, s{sB1} offen {fl}""")
def kernel_p2(name, st=None):
    a = Asm()
    if st: st.mark(a)
    a(f"""
    s_cmp_ge_u32 s2, 264
    s_cbranch_scc1 {name}_end""")
    load_args(a); lane_setup(a); mk_table_srd(a, name); p2_ids(a)
    a("    s_waitcnt lgkmcnt(0)")
    mk_srd(a, R_WS, S_WS, WS_SIZE); mk_srd(a, R_WR, S_WR, 2101248); mk_srd(a, R_WI, S_WI, 2101248)
    first = BLK[("2A",0)]
    TAB, LI, LW, LO = 0, 10240, 26752, 47232
    p2_issue_in(a); p2_issue_w(a)
    dma_tables(a, first, 10, TAB)
    a("    s_waitcnt vmcnt(0)")
    if st: st.mark(a)
    p2_in_to_lds(a, LI); p2_w_to_lds(a, LW)
    a("    s_waitcnt lgkmcnt(0)\n    s_barrier")
    p2_read_tables(a, TAB, first)
    a("    s_waitcnt lgkmcnt(0)")
    p2_compute(a, LI, LW, LO)
    if st: st.mark(a)
    p2_out(a, LO)
    if st: st.flush(a)
    a(f"{name}_end:\n    s_endpgm")
    return a, 128, 67712
```

```python
from common import *
from p1 import sW,sT0,sT1,sT2,sT3,sT4,sT5,sRowI,sRow,vLane,vL16,vG,vB,lane_setup,dma_tables,r8_matrix
sL0, sL1, sLN, sIdx, sMb, sRs, sRsel = 83,84,85,86,87,88,89
ROW3 = 2368
def argmax_keys(a, dst_s, tmp, src_off=WS_CAND, fl=""):
    a(f"""
    buffer_load_dwordx4 {v4(tmp)}, v{vL16}, {srd(R_WS)}, s{sT5} offen {fl}""")
def argmax_finish(a, dst_s, tmp):
    a(f"""
    v_max3_u32 v{tmp}, v{tmp}, v{tmp+1}, v{tmp+2}
    v_max_u32 v{tmp}, v{tmp}, v{tmp+3}""")
    for m in ("row_shr:1 row_mask:0xf","row_shr:2 row_mask:0xf","row_shr:4 row_mask:0xf","row_shr:8 row_mask:0xf","row_bcast:15 row_mask:0xa","row_bcast:31 row_mask:0xc"):
        a(f"    v_max_u32_dpp v{tmp}, v{tmp}, v{tmp} {m} bank_mask:0xf")
    a(f"    v_readlane_b32 s{dst_s}, v{tmp}, 63")
def p3_issue_in(a, IN=8, NQ=16, fl=""):
    a(f"""
    s_lshr_b32 s{sT0}, s2, 1
    s_mul_i32 s{sL0}, s{sT0}, {B_IP}
    s_and_b32 s{sT0}, s2, 1
    s_lshl_b32 s{sT0}, s{sT0}, 6
    s_add_u32 s{sL0}, s{sL0}, s{sT0}
    s_add_u32 s{sL0}, s{sL0}, {WS_B}
    s_add_u32 s{sLN}, s{sL0}, {32*128}
    s_lshl_b32 s{sT0}, s{sW}, 9
    s_add_u32 s{sL0}, s{sL0}, s{sT0}
    s_add_u32 s{sL1}, s{sL0}, {33*128}
    v_mul_u32_u24 v6, {2*33*128}, v{vG}
    v_lshrrev_b32 v7, 2, v{vB}
    v_lshl_add_u32 v7, v7, 7, v6
    v_and_b32 v3, 3, v{vB}
    v_lshl_add_u32 v7, v3, 4, v7
    buffer_load_dwordx4 {v4(IN)}, v7, {srd(R_WS)}, s{sL0} offen {fl}
    buffer_load_dwordx4 {v4(IN+4)}, v7, {srd(R_WS)}, s{sL1} offen {fl}""")
def p3_issue_nyq(a, NQ=16, fl=""):
    a(f"""
    v_mul_u32_u24 v6, {2*33*128}, v{vG}
    s_add_u32 s{sT0}, s{sLN}, {33*128}
    buffer_load_dword v{NQ}, v6, {srd(R_WS)}, s{sLN} offen {fl}
    buffer_load_dword v{NQ+1}, v6, {srd(R_WS)}, s{sT0} offen {fl}""")
def p3_issue_x(a, XR):
    a(f"""
    s_lshl_b32 s{sRowI}, s{sW}, 8
    s_add_u32 s{sRowI}, s{sRowI}, s2
    s_lshl_b32 s{sRow}, s{sRowI}, 11
    v_lshlrev_b32 v3, 6, v{vB}
    v_lshl_add_u32 v3, v{vG}, 4, v3
    buffer_load_dwordx4 {v4(XR)}, v3, {srd(R_X)}, s{sRow} offen
    buffer_load_dwordx4 {v4(XR+4)}, v3, {srd(R_X)}, s{sRow} offen offset:1024""")
T3A,T3W,T3B = 24,40,24
XR, GP = 56, 64
def p3_read_tables(a, TAB, first):
    o = lambda k: TAB + (BLK[k]-first)*1024
    for bh in range(2):
        for oc in range(2): a(f"    ds_read_b128 {v4(T3A+8*bh+4*oc)}, v{vL16} offset:{o(('3A',bh,oc))}")
    for ch in range(2):
        for bh in range(2): a(f"    ds_read_b128 {v4(T3W+8*ch+4*bh)}, v{vL16} offset:{o(('3W',ch,bh))}")
def p3_read_t3b(a, TAB, first):
    o = lambda k: TAB + (BLK[k]-first)*1024
    for ch in range(2):
        for ah in range(2): a(f"    ds_read_b128 {v4(T3B+8*ch+4*ah)}, v{vL16} offset:{o(('3B',ch,ah))}")
R8I = 126
def p3_r8(a, LX3, IN=8, NQ=16):
    OP, D, PKd = 72, 80, 96
    for tau in range(4):
        a(f"    v_mov_b32 v{OP+2*tau}, v{IN+tau}\n    v_mov_b32 v{OP+2*tau+1}, v{IN+4+tau}")
    for tau in range(4):
        a(f"    v_mfma_f32_16x16x16_bf16 {v4(D+4*tau)}, {v2(R8I)}, {v2(OP+2*tau)}, 0")
    a(f"""
    v_mul_u32_u24 v6, {2*ROW3}, v{vG}
    v_lshl_add_u32 v6, v{vB}, 4, v6
    s_lshr_b32 s{sT0}, s{sW}, 1
    s_lshl_b32 s{sT0}, s{sT0}, 6
    s_lshl_b32 s{sT1}, s{sW}, 8
    s_add_u32 s{sT0}, s{sT0}, s{sT1}
    s_add_u32 s{sT0}, s{sT0}, {LX3}
    v_add_u32 v6, s{sT0}, v6""")
    for e in range(2):
        for tau in range(4):
            a(f"    v_cvt_pk_bf16_f32 v{PKd+4*e+tau}, v{D+4*tau+2*e}, v{D+4*tau+2*e+1}")
        a(f"    ds_write_b128 v6, {v4(PKd+4*e)} offset:{ROW3*e}")
    lab = f"Lp3n_{len(a.lines)}"
    a(f"""
    s_cmp_lg_u32 s{sW}, 7
    s_cbranch_scc1 {lab}
    v_mfma_f32_16x16x16_bf16 v[104:107], {v2(R8I)}, {v2(NQ)}, 0
    v_mul_u32_u24 v6, {2*ROW3}, v{vG}
    v_cmp_eq_u32 vcc, 0, v{vB}
    s_and_saveexec_b64 s[90:91], vcc
    v_cvt_pk_bf16_f32 v104, v104, v105
    v_cvt_pk_bf16_f32 v105, v106, v107
    ds_write_b32 v6, v104 offset:{LX3+576*4}
    ds_write_b32 v6, v105 offset:{LX3+576*4+ROW3}
    s_mov_b64 exec, s[90:91]
{lab}:""")
def p3_rows(a, LX3, TAB, first):
    ZO, D, ZZ, TM = 8, 80, 8, 112
    a(f"""
    v_mul_u32_u24 v6, 576, v{vG}
    v_lshl_add_u32 v6, v{vB}, 2, v6
    s_mul_i32 s{sT0}, s{sW}, {ROW3}
    s_add_u32 s{sT0}, s{sT0}, {LX3}
    v_add_u32 v6, s{sT0}, v6
    v_mov_b32 v7, s{sT0}""")
    for ch in range(2):
        a(f"    ds_read2_b32 {v2(ZO+4*ch)}, v6 offset0:{16*ch} offset1:{16*ch+32}")
        a(f"    ds_read2_b32 {v2(ZO+4*ch+2)}, v6 offset0:{16*ch+64} offset1:{16*ch+96}")
    a(f"    ds_read_b32 v122, v7\n    ds_read_b32 v123, v7 offset:{576*4}")
    for ch in range(2):
        a(f"    s_waitcnt lgkmcnt({4-2*ch})")
        for bh in range(2):
            for oc in range(2):
                a(f"    v_mfma_f32_16x16x32_bf16 {v4(D+16*ch+8*bh+4*oc)}, {v4(ZO+4*ch)}, {v4(T3A+8*bh+4*oc)}, 0")
    a("    s_waitcnt lgkmcnt(0)")
    p3_read_t3b(a, TAB, first)
    a(f"""
    v_lshlrev_b32 v122, 16, v122            ; z0.re
    v_lshlrev_b32 v123, 16, v123            ; zq.re
    v_sub_f32 v120, v123, v122
    v_add_f32 v121, v123, v122
    v_mul_f32 v120, 0x36000000, v120        ; (zq - z0) * 2^-19
    v_mul_f32 v121, 0xb6000000, v121        ; -(zq + z0) * 2^-19""")
    ZZ = 96
    for ch in range(2):
        for bh in range(2):
            gr = D+16*ch+8*bh; gi = gr+4; tw = T3W+8*ch+4*bh
            for r in range(4):
                a(f"    v_fma_mix_f32 v{TM+2*r}, v{gr+r}, v{tw+r}, 0 op_sel:[0,0,0] op_sel_hi:[0,1,0]")
                a(f"    v_fma_mix_f32 v{TM+2*r+1}, v{gr+r}, v{tw+r}, 0 op_sel:[0,1,0] op_sel_hi:[0,1,0]")
            for r in range(4):
                a(f"    v_fma_mix_f32 v{TM+2*r}, -v{gi+r}, v{tw+r}, v{TM+2*r} op_sel:[0,1,0] op_sel_hi:[0,1,0]")
                a(f"    v_fma_mix_f32 v{TM+2*r+1}, v{gi+r}, v{tw+r}, v{TM+2*r+1} op_sel:[0,0,0] op_sel_hi:[0,1,0]")
            dst = (8 + 8*ch + 4*bh)
            for r in range(4): a(f"    v_cvt_pk_bf16_f32 v{dst+r}, v{TM+2*r}, v{TM+2*r+1}")
    a("    s_waitcnt lgkmcnt(0)")
    for bh in range(2):
        for ah in range(2):
            d = 80+8*bh+4*ah
            for ch in range(2):
                c = "0" if ch == 0 else v4(d)
                a(f"    v_mfma_f32_16x16x32_bf16 {v4(d)}, {v4(8+8*ch+4*bh)}, {v4(T3B+8*ch+4*ah)}, {c}")

LOG2E = "0x3fb8aa3b"
def silu_pair(a, z0, z1, t0, t1, dst, sNL):
    a(f"""
    v_mul_f32 v{t0}, s{sNL}, v{z0}
    v_mul_f32 v{t1}, s{sNL}, v{z1}
    v_exp_f32 v{t0}, v{t0}
    v_exp_f32 v{t1}, v{t1}
    v_add_f32 v{t0}, 1.0, v{t0}
    v_add_f32 v{t1}, 1.0, v{t1}
    v_rcp_f32 v{t0}, v{t0}
    v_rcp_f32 v{t1}, v{t1}
    v_mul_f32 v{t0}, v{z0}, v{t0}
    v_mul_f32 v{t1}, v{z1}, v{t1}
    v_cvt_pk_bf16_f32 v{dst}, v{t0}, v{t1}""")
def xn_pair(a, xr, z0, z1):
    a(f"""
    v_lshlrev_b32 v{z0}, 16, v{xr}
    v_and_b32 v{z1}, 0xffff0000, v{xr}
    v_subrev_f32 v{z0}, s{sMb}, v{z0}
    v_subrev_f32 v{z1}, s{sMb}, v{z1}
    v_cvt_pk_bf16_f32 v{z0}, v{z0}, v{z1}
    v_and_b32 v{z1}, 0xffff0000, v{z0}
    v_lshlrev_b32 v{z0}, 16, v{z0}
    v_mul_f32 v{z0}, s{sRs}, v{z0}
    v_mul_f32 v{z1}, s{sRs}, v{z1}
    v_cvt_pk_bf16_f32 v{z0}, v{z0}, v{z1}
    v_and_b32 v{z1}, 0xffff0000, v{z0}
    v_lshlrev_b32 v{z0}, 16, v{z0}""")
def p3_gate(a, YL=None):
    a(f"    s_mov_b32 s{sT0}, 0xbfb8aa3b")
    for dw in range(8):
        z0, z1, t0, t1 = 112+4*(dw&1), 113+4*(dw&1), 114+4*(dw&1), 115+4*(dw&1)
        xn_pair(a, XR+dw, z0, z1)
        if YL is not None:
            a(f"""
    v_add_f32 v{z0}, v{z0}, v{YL+2*dw}
    v_add_f32 v{z1}, v{z1}, v{YL+2*dw+1}
    v_cvt_pk_bf16_f32 v{z0}, v{z0}, v{z1}
    v_and_b32 v{z1}, 0xffff0000, v{z0}
    v_lshlrev_b32 v{z0}, 16, v{z0}""")
        silu_pair(a, z0, z1, t0, t1, GP+dw, sT0)
def p3_final(a):
    a(f"    s_mov_b32 s{sT0}, 0x36800000")
    O = 8
    for ah in range(2):
        for dw in range(4):
            bh, r2 = dw >> 1, dw & 1
            d = 80+8*bh+4*ah+2*r2
            xr, g = XR+4*ah+dw, GP+4*ah+dw
            t = 96 + 6*(dw&1) + 12*(ah&1)
            a(f"""
    v_fma_f32 v{t}, v{d}, s{sT0}, v120
    v_fma_f32 v{t+1}, v{d+1}, s{sT0}, v121
    v_cvt_pk_bf16_f32 v{t}, v{t}, v{t+1}
    v_lshlrev_b32 v{t+2}, 16, v{g}
    v_and_b32 v{t+3}, 0xffff0000, v{g}
    v_and_b32 v{t+1}, 0xffff0000, v{t}
    v_lshlrev_b32 v{t}, 16, v{t}
    v_mul_f32 v{t}, v{t}, v{t+2}
    v_mul_f32 v{t+1}, v{t+1}, v{t+3}
    v_cvt_pk_bf16_f32 v{t}, v{t}, v{t+1}
    v_lshlrev_b32 v{t+2}, 16, v{xr}
    v_and_b32 v{t+3}, 0xffff0000, v{xr}
    v_and_b32 v{t+1}, 0xffff0000, v{t}
    v_lshlrev_b32 v{t}, 16, v{t}
    v_add_f32 v{t}, v{t}, v{t+2}
    v_add_f32 v{t+1}, v{t+1}, v{t+3}
    v_cvt_pk_bf16_f32 v{O+4*ah+dw}, v{t}, v{t+1}""")
        a(f"""
    v_lshlrev_b32 v3, 6, v{vB}
    v_lshl_add_u32 v3, v{vG}, 4, v3
    buffer_store_dwordx4 {v4(O+4*ah)}, v3, {srd(R_OUT)}, s{sRow} offen offset:{1024*ah}""")
def key_decode(a, sKeyIn):
    a(f"""
    s_and_b32 s{sIdx}, s{sKeyIn}, 0x7ff
    s_sub_u32 s{sIdx}, 2047, s{sIdx}
    s_lshr_b32 s{sT0}, s{sKeyIn}, 16
    s_and_b32 s{sT1}, s{sT0}, 0x7fff
    s_xor_b32 s{sT2}, s{sT0}, 0xffff
    s_bitcmp1_b32 s{sT0}, 15
    s_cselect_b32 s{sT0}, s{sT1}, s{sT2}
    s_lshl_b32 s{sT0}, s{sT0}, 16
    v_mov_b32 v6, s{sT0}
    v_mul_f32 v6, 0xbfb8aa3b, v6
    v_exp_f32 v6, v6
    v_add_f32 v6, 1.0, v6
    v_rcp_f32 v6, v6
    v_cvt_pk_bf16_f32 v6, v6, v6
    v_and_b32 v6, 0xffff0000, v6
    v_readfirstlane_b32 s{sRsel}, v6""")
def y_reduce(a, LY, tag, fl=""):
    a(f"""
    v_and_b32 v6, 255, v0
    v_lshlrev_b32 v6, 4, v6
    v_lshrrev_b32 v7, 8, v0
    v_lshl_add_u32 v3, v7, 15, v6           ; half*8*4096
    s_mov_b32 s{sT0}, {WS_Y}""")
    for m in range(8):
        a(f"    s_add_u32 s{sT1}, s{sT0}, {4096*m}\n    buffer_load_dwordx4 {v4(80+4*m)}, v3, {srd(R_WS)}, s{sT1} offen {fl}")
    a("    s_waitcnt vmcnt(0)")
    for m in range(1,8):
        for k in range(4): a(f"    v_add_f32 v{80+k}, v{80+k}, v{80+4*m+k}")
    a(f"""
    v_lshl_add_u32 v6, v7, 12, v6
    ds_write_b128 v6, v[80:83] offset:{LY}
    s_waitcnt lgkmcnt(0)
    s_barrier""")
def y_fetch(a, LY, YL):
    a(f"""
    v_lshlrev_b32 v3, 7, v{vB}
    v_lshl_add_u32 v3, v{vG}, 5, v3""")
    for ah in range(2):
        a(f"    ds_read_b128 {v4(YL+8*ah)}, v3 offset:{LY+2048*ah}")
        a(f"    ds_read_b128 {v4(YL+8*ah+4)}, v3 offset:{LY+2048*ah+16}")
        a(f"    ds_read_b128 {v4(96+8*ah)}, v3 offset:{LY+4096+2048*ah}")
        a(f"    ds_read_b128 {v4(96+8*ah+4)}, v3 offset:{LY+4096+2048*ah+16}")
    a("    s_waitcnt lgkmcnt(0)")
    for k in range(16): a(f"    v_add_f32 v{YL+k}, v{YL+k}, v{96+k}")
    for k in range(0,16,2):
        a(f"""
    v_cvt_pk_bf16_f32 v{96+k}, v{YL+k}, v{YL+k+1}
    v_and_b32 v{YL+k+1}, 0xffff0000, v{96+k}
    v_lshlrev_b32 v{YL+k}, 16, v{96+k}
    v_mul_f32 v{YL+k}, s{sRsel}, v{YL+k}
    v_mul_f32 v{YL+k+1}, s{sRsel}, v{YL+k+1}
    v_cvt_pk_bf16_f32 v{96+k}, v{YL+k}, v{YL+k+1}
    v_and_b32 v{YL+k+1}, 0xffff0000, v{96+k}
    v_lshlrev_b32 v{YL+k}, 16, v{96+k}""")
def kernel_p3(name, st=None):
    a = Asm()
    if st: st.mark(a)
    a(f"""
    s_cmp_ge_u32 s2, 256
    s_cbranch_scc1 {name}_end""")
    load_args(a); lane_setup(a); mk_table_srd(a, name)
    a("    s_waitcnt lgkmcnt(0)")
    mk_srd(a, R_WS, S_WS, WS_SIZE); mk_srd(a, R_X, S_X, 4194304); mk_srd(a, R_OUT, S_OUT, 4194304)
    first = BLK[("3A",0,0)]
    TAB, LX3, LY = 0, 12288, 12288+8*ROW3
    p3_issue_in(a); p3_issue_nyq(a, 124); p3_issue_x(a, XR)
    a(f"    s_mov_b32 s{sT5}, {WS_CAND}")
    argmax_keys(a, 90, 16)
    a(f"""
    s_lshl_b32 s{sT0}, s{sRowI}, 3
    s_add_u32 s{sT0}, s{sT0}, {WS_ST}
    s_load_dwordx2 s[{sMb}:{sMb+1}], s[24:25], s{sT0}""".replace(f"s[{sMb}:{sMb+1}]", "s[92:93]"))
    dma_tables(a, first, 12, TAB)
    r8_matrix(a, R8I, True, 112)
    a(f"""
    s_waitcnt vmcnt(0) lgkmcnt(0)
    s_mov_b32 s{sMb}, s92
    s_mov_b32 s{sRs}, s93""")
    if st: st.mark(a)
    argmax_finish(a, 94, 16)
    key_decode(a, 94)
    a("    s_barrier")
    p3_read_tables(a, TAB, first)
    p3_r8(a, LX3, 8, 124)
    a(f"""
    s_and_b32 s{sT0}, s{sIdx}, 255
    s_cmp_eq_u32 s{sT0}, s2
    s_cbranch_scc0 {name}_noown""")
    y_reduce(a, LY, name)
    a(f"""
    s_cmp_eq_u32 s{sIdx}, s{sRowI}
    s_cbranch_scc0 {name}_noown""")
    y_fetch(a, LY, 80)
    p3_gate(a, 80)
    a(f"    s_branch {name}_gdone\n{name}_noown:")
    p3_gate(a)
    a(f"{name}_gdone:\n    s_waitcnt lgkmcnt(0)\n    s_barrier")
    p3_rows(a, LX3, TAB, first)
    if st: st.mark(a)
    p3_final(a)
    if st: st.flush(a)
    a(f"{name}_end:\n    s_endpgm")
    return a, 128, LY + 8192
```

```python
from common import *
WS_STAMP = 0xC00000
class Stamper:
    def __init__(self, kidx, first_pair, enabled=True):
        self.k = kidx; self.n = 0; self.p = first_pair; self.en = enabled
    def mark(self, a):
        if not self.en: return
        r = self.p + 2*self.n
        a(f"    s_memrealtime s[{r}:{r+1}]")
        self.n += 1
    def flush(self, a):
        if not self.en: return
        lab = f"Lstf_{self.k}_{len(a.lines)}"
        a("    s_waitcnt vmcnt(0) lgkmcnt(0)")
        self.mark(a)
        a(f"""
    s_waitcnt lgkmcnt(0)
    s_mov_b64 exec, -1
    v_and_b32 v1, 63, v0
    v_cmp_eq_u32 vcc, 0, v1
    s_and_b64 exec, exec, vcc
    s_cbranch_execz {lab}
    s_lshl_b32 s101, s2, 3
    s_add_u32 s101, s101, s68
    s_lshl_b32 s101, s101, 6
    s_add_u32 s101, s101, {WS_STAMP + self.k*0x40000}
    v_mov_b32 v1, s101""")
        for i in range(self.n):
            a(f"    v_mov_b32 v2, s{self.p+2*i}\n    buffer_store_dword v2, v1, {srd(R_WS)}, 0 offen offset:{4*i}")
        a(f"{lab}:")
```

```python
import numpy as np
PI = np.pi
def bf16_bits(x):
    u = np.asarray(x, np.float32).view(np.uint32).astype(np.uint64)
    return (((u + 0x7fff + ((u >> 16) & 1)) >> 16) & 0xffff).astype(np.uint16)
def bf16r(x):
    return (bf16_bits(x).astype(np.uint32) << 16).view(np.float32)
def f16_bits(x): return np.asarray(x, np.float64).astype(np.float16).view(np.uint16)
def f16r(x): return np.asarray(x).astype(np.float16).astype(np.float32)
def pack(vals, kind):
    b = bf16_bits(vals) if kind == "bf16" else f16_bits(vals)
    b = b.astype(np.uint32).reshape(64, -1, 2)
    return (b[:, :, 0] | (b[:, :, 1] << 16)).astype(np.uint32)
SC1 = 0.25
L = np.arange(64); G = L >> 4; LO = L & 15
def c_(x): return np.cos(x)
def s_(x): return np.sin(x)
def fwd_pair(th, oc):
    return (c_(th), s_(th)) if oc == 0 else (-s_(th), c_(th))
def inv_pair(th, oc):
    return (c_(th), -s_(th)) if oc == 0 else (s_(th), c_(th))
def build():
    T = {}
    for ch in range(2):
        for oc in range(2):
            v = np.zeros((64, 8))
            for q in range(8):
                a = 8*G + q; c = 16*ch + LO
                th = 2*PI*((a*c) % 32)/32
                v[:, q] = (c_(th) if oc == 0 else -s_(th))*SC1
            T[("1A", ch, oc)] = pack(v, "bf16")
    for ch in range(2):
        for t in range(2):
            v = np.zeros((64, 8))
            for r in range(4):
                b = 8*G + 2*r + t; c = 16*ch + LO
                th = 2*PI*((b*c) % 1024)/1024
                v[:, 2*r] = c_(th); v[:, 2*r+1] = -s_(th)
            T[("1W", ch, t)] = pack(v, "f16")
    for sg in range(2):
        for rho in range(2):
            v = np.zeros((64, 8))
            gam = LO >> 2; d0 = (LO >> 1) & 1; oc = LO & 1
            d = 8*rho + 2*gam + d0
            for r in range(4):
                b = 8*G + 2*r + sg
                th = 2*PI*((b*d) % 32)/32
                p0 = fwd_pair(th, 0); p1 = fwd_pair(th, 1)
                v[:, 2*r] = np.where(oc == 0, p0[0], p1[0]); v[:, 2*r+1] = np.where(oc == 0, p0[1], p1[1])
            T[("1B", sg, rho)] = pack(v, "f16")
    for oc in range(2):
        v = np.zeros((64, 8))
        for t in range(4):
            a = 4*G + t; c = LO
            th = 2*PI*((a*c) % 16)/16
            p = fwd_pair(th, oc); v[:, 2*t] = p[0]; v[:, 2*t+1] = p[1]
        T[("2A", oc)] = pack(v, "f16")
    v = np.zeros((64, 8))
    for r in range(4):
        b = 4*G + r; c = LO; th = 2*PI*((b*c) % 256)/256
        v[:, 2*r] = c_(th); v[:, 2*r+1] = -s_(th)
    T[("2W",)] = pack(v, "f16")
    for rho in range(2):
        v = np.zeros((64, 8))
        gam = LO >> 2; d0 = (LO >> 1) & 1; oc = LO & 1
        d = 4*gam + 2*rho + d0
        for r in range(4):
            b = 4*G + r; th = 2*PI*((b*d) % 16)/16
            p0 = fwd_pair(th, 0); p1 = fwd_pair(th, 1)
            v[:, 2*r] = np.where(oc == 0, p0[0], p1[0]); v[:, 2*r+1] = np.where(oc == 0, p0[1], p1[1])
        T[("2B", rho)] = pack(v, "f16")
    for oc in range(2):
        v = np.zeros((64, 8))
        for t in range(4):
            d = 4*G + t; e = LO; th = 2*PI*((d*e) % 16)/16
            p = inv_pair(th, oc); v[:, 2*t] = p[0]; v[:, 2*t+1] = p[1]
        T[("2C", oc)] = pack(v, "bf16")
    v = np.zeros((64, 8))
    for r in range(4):
        c = 4*G + r; e = LO; th = 2*PI*((c*e) % 256)/256
        v[:, 2*r] = c_(th); v[:, 2*r+1] = s_(th)
    T[("2V",)] = pack(v, "f16")
    for rho in range(2):
        v = np.zeros((64, 8))
        gam = LO >> 2; f0 = (LO >> 1) & 1; oc = LO & 1
        f = 4*gam + 2*rho + f0
        for r in range(4):
            c = 4*G + r; th = 2*PI*((c*f) % 16)/16
            p0 = inv_pair(th, 0); p1 = inv_pair(th, 1)
            v[:, 2*r] = np.where(oc == 0, p0[0], p1[0]); v[:, 2*r+1] = np.where(oc == 0, p0[1], p1[1])
        T[("2D", rho)] = pack(v, "bf16")
    def bmap(bh, j): return 8*(j >> 2) + 4*bh + (j & 3)
    for bh in range(2):
        for oc in range(2):
            v = np.zeros((64, 8))
            b = bmap(bh, LO)
            for p in range(4):
                d = 4*G + p; th = 2*PI*((b*d) % 32)/32
                q = inv_pair(th, oc); v[:, 2*p] = q[0]; v[:, 2*p+1] = q[1]
            T[("3A", bh, oc)] = pack(v, "bf16")
    for ch in range(2):
        for bh in range(2):
            v = np.zeros((64, 8))
            b = bmap(bh, LO)
            for rho in range(4):
                c = 16*ch + 4*G + rho; th = 2*PI*((b*c) % 1024)/1024
                v[:, 2*rho] = c_(th); v[:, 2*rho+1] = s_(th)
            T[("3W", ch, bh)] = pack(v, "f16")
    for ch in range(2):
        for ah in range(2):
            v = np.zeros((64, 8))
            a = 16*ah + LO
            for rho in range(4):
                c = 16*ch + 4*G + rho; th = 2*PI*((a*c) % 32)/32
                v[:, 2*rho] = c_(th); v[:, 2*rho+1] = -s_(th)
            T[("3B", ch, ah)] = pack(v, "bf16")
    return T
ORDER = ([("2A",0),("2A",1),("2W",),("2B",0),("2B",1),("2C",0),("2C",1),("2V",),("2D",0),("2D",1)] +
         [("3A",bh,oc) for bh in range(2) for oc in range(2)] + [("3W",ch,bh) for ch in range(2) for bh in range(2)] +
         [("3B",ch,ah) for ch in range(2) for ah in range(2)] +
         [("1A",ch,oc) for ch in range(2) for oc in range(2)] + [("1W",ch,t) for ch in range(2) for t in range(2)] +
         [("1B",sg,rho) for sg in range(2) for rho in range(2)])
BLK = {k: i for i, k in enumerate(ORDER)}
def table_words():
    T = build()
    return np.concatenate([T[k].reshape(-1) for k in ORDER])
if __name__ == "__main__":
    w = table_words(); print(len(w), "dwords", len(ORDER), "blocks")
```

```python
from build import *
import p3, p1
p3.sMb, p3.sRs = 81, 82
from mega import *
from stamps import Stamper
NAME = "recurrent_scan__spectral_gfnet__moe_arch_mod__prompt_kernel"
import sys
a, vg, lds = kernel_mega("mega_kernel")
assemble_list([("mega_kernel", a, vg)], [("mega_kernel", 488, 512, lds)], "out_mega.s")
```

```python
from common import *
import p1, p2, p3, moe
from p1 import sW,sT0,sT1,sT2,sT3,sT4,sT5,sRow,sRowI,sKey,sA0,sA1,sAN,vLane,vL16,vXo,vG,vB,lane_setup,r8_matrix,ln_stats
from p2 import sJP,sKB,sIn,sWo,sSh,sB0,sB1
TAB  = 0
LI   = 22528
LY   = 22528
LW   = 39040
LX3  = 39040
LX1  = 59520
LO   = 59520
KEYS = 80064
LDS_BYTES = 80384
M_RED, M_SEG, M_H, M_CTRL, M_LG, M_LU = 0, 4096, 12288, 13312, 14336, 14336+32768
sMb, sRs = 81, 82
sNonce, sTag8, sTA = 95, 96, 97
sRole, sPoll = 26, 27
sEx = 90
MAXPOLL = 20000
FL = "sc0 sc1"
OPT = dict(noweights=False, noclean=False, nomoe=False, now=False, ctrl_sleep=6, ctrl_delay=0)
def derive_tags(a):
    a(f"""
    s_add_u32 s{sNonce}, s{sNonce}, 1
    s_and_b32 s{sTag8}, s{sNonce}, 0xff""")
    for u in range(4):
        a(f"""
    s_bfe_u32 s{sT0}, s{sTag8}, {(1<<16) | (2*u)}
    s_bfe_u32 s{sT1}, s{sTag8}, {(1<<16) | (2*u+1)}
    s_lshl_b32 s{sT1}, s{sT1}, 16
    s_or_b32 s{sTA+u}, s{sT0}, s{sT1}""")
def poll_tail(a, lab, done, sleep):
    a(f"""
    s_nop 4
    s_cbranch_vccz {done}
    s_add_u32 s{sPoll}, s{sPoll}, 1
    s_cmp_gt_u32 s{sPoll}, {MAXPOLL}
    s_cbranch_scc1 {done}
    s_sleep {sleep}
    s_branch {lab}
{done}:""")
def dma_all_tables(a, slots):
    for k in slots:
        lab = f"Ldt_{k}_{len(a.lines)}"
        a(f"    s_add_u32 s{sT0}, s{sW}, {8*k}")
        if k == 4: a(f"    s_cmp_ge_u32 s{sT0}, 34\n    s_cbranch_scc1 {lab}")
        a(f"""
    s_add_u32 s{sT0}, s{sT0}, 22
    s_sub_u32 s{sT1}, s{sT0}, 34
    s_cmp_ge_u32 s{sT0}, 34
    s_cselect_b32 s{sT0}, s{sT1}, s{sT0}
    s_lshl_b32 s{sT0}, s{sT0}, 10
    s_mov_b32 m0, s{sT0}
    s_nop 0
    buffer_load_dwordx4 v{vL16}, {srd(R_T)}, s{sT0} offen lds""")
        if k == 4: a(f"{lab}:")
def b_line_addr(a, vdst, t0):
    a(f"""
    v_lshrrev_b32 v{vdst}, 3, v{vLane}
    s_mov_b32 s{sT1}, {B_IP}
    v_mul_lo_u32 v{vdst}, v{vdst}, s{sT1}
    v_and_b32 v{t0}, 7, v{vLane}
    v_lshl_add_u32 v{vdst}, v{t0}, 4, v{vdst}
    s_mul_i32 s{sB0}, s{sJP}, 33
    s_add_u32 s{sB0}, s{sB0}, s{sKB}
    s_lshl_b32 s{sB0}, s{sB0}, 7
    s_mul_i32 s{sT0}, s{sW}, {16*B_IP}
    s_add_u32 s{sB0}, s{sB0}, s{sT0}
    s_add_u32 s{sB0}, s{sB0}, {WS_B}
    s_add_u32 s{sB1}, s{sB0}, {8*B_IP}""")
def clean_b(a):
    lab = f"Lcl_{len(a.lines)}"
    a("    v_mov_b32 v100, -1\n    v_mov_b32 v101, -1\n    v_mov_b32 v102, -1\n    v_mov_b32 v103, -1")
    b_line_addr(a, 104, 105)
    a(f"""
    buffer_store_dwordx4 v[100:103], v104, {srd(R_WS)}, s{sB0} offen {FL}
    buffer_store_dwordx4 v[100:103], v104, {srd(R_WS)}, s{sB1} offen {FL}
    s_cmp_lg_u32 s{sW}, 0
    s_cbranch_scc1 {lab}
    v_lshrrev_b32 v104, 3, v{vLane}
    s_lshl_b32 s{sT0}, s2, 2
    v_add_u32 v104, s{sT0}, v104
    v_lshrrev_b32 v105, 3, v104
    s_mov_b32 s{sT1}, {B_IP}
    v_mul_lo_u32 v105, v105, s{sT1}
    v_and_b32 v104, 7, v104
    v_mul_u32_u24 v104, {33*128}, v104
    v_add_u32 v104, v104, v105
    v_and_b32 v105, 7, v{vLane}
    v_lshl_add_u32 v104, v105, 4, v104
    s_mov_b32 s{sT0}, {WS_B + 32*128}
    v_cmp_gt_u32 vcc, 32, v{vLane}
    s_and_saveexec_b64 s[{sEx}:{sEx+1}], vcc
    buffer_store_dwordx4 v[100:103], v104, {srd(R_WS)}, s{sT0} offen {FL}
    s_mov_b64 exec, s[{sEx}:{sEx+1}]
{lab}:""")
def fft_p1(a, st):
    X, WRr, WR, xf, acc, DB, XN, T1A, D = 8, 16, 24, 32, 48, 52, 60, 68, 84
    R8M = 116
    W0, W1 = 84, 92
    r8_matrix(a, R8M, False, 118)
    a(f"    s_mov_b32 s{sT3}, 0x05040100\n    s_mov_b32 s{sT4}, 0x07060302")
    a("    s_waitcnt vmcnt(%d)" % (10 + (0 if OPT["now"] else 4) + (0 if OPT["noclean"] else 2)))
    if st: st.mark(a, 'm0')
    a("    s_barrier")
    for ch in range(2):
        for oc in range(2):
            a(f"    ds_read_b128 {v4(T1A+8*ch+4*oc)}, v{vL16} offset:{TAB+BLK[('1A',ch,oc)]*1024}")
    ln_stats(a, X, xf, DB, acc, sMb, sRs, 124)
    for k in range(16): a(f"    v_mul_f32 v{xf+k}, s{sRs}, v{xf+k}")
    for t in range(2):
        for p in range(4):
            a(f"    v_cvt_pk_bf16_f32 v{XN+4*t+p}, v{xf+8*t+2*p}, v{xf+8*t+2*p+1}")
    a("    s_waitcnt vmcnt(0) lgkmcnt(0)")
    p2.p2_w_to_lds(a, LW, W0, W1)
    a(f"    s_mov_b32 s{sT3}, 0x05040100\n    s_mov_b32 s{sT4}, 0x07060302")
    for p in range(4):
        a(f"    v_perm_b32 v{WR+p}, v{WRr+2*p+1}, v{WRr+2*p}, s{sT3}")
        a(f"    v_perm_b32 v{WR+4+p}, v{WRr+2*p+1}, v{WRr+2*p}, s{sT4}")
    if st: st.mark(a, 'm1')
    for ch in range(2):
        for t in range(2):
            a(f"    ds_read_b128 {v4(8+8*ch+4*t)}, v{vL16} offset:{TAB+BLK[('1W',ch,t)]*1024}")
    for ch in range(2):
        for t in range(2):
            for oc in range(2):
                a(f"    v_mfma_f32_16x16x32_bf16 {v4(D+16*ch+8*t+4*oc)}, {v4(XN+4*t)}, {v4(T1A+8*ch+4*oc)}, 0")
    for sg in range(2):
        for rho in range(2):
            a(f"    ds_read_b128 {v4(32+8*sg+4*rho)}, v{vL16} offset:{TAB+BLK[('1B',sg,rho)]*1024}")
    a(f"    s_mov_b32 s{sT1}, 0x3f803f80\n    s_mov_b32 s{sT5}, 0xbf80bf80\n    v_mov_b32 v{acc}, 0\n    v_mov_b32 v{acc+1}, 0")
    for t in range(2):
        for p in range(4):
            a(f"    v_dot2c_f32_bf16 v{acc}, v{WR+4*t+p}, v{XN+4*t+p}")
            a(f"    v_dot2c_f32_bf16 v{acc+1}, s{sT1 if t==0 else sT5}, v{XN+4*t+p}")
    for s0,s1 in zip(dpp_sum_steps(acc), dpp_sum_steps(acc+1)):
        a(s0); a(s1)
    a(f"""
    v_readlane_b32 s{sT1}, v{acc}, 63
    v_readlane_b32 s{sT2}, v{acc+1}, 63
    v_cvt_pk_bf16_f32 v{acc+2}, s{sT1}, s{sT1}
    v_mov_b32 v{acc+3}, 0x3e800000
    v_mul_f32 v{acc+3}, s{sT2}, v{acc+3}
    v_readfirstlane_b32 s{sT1}, v{acc+2}
    v_cvt_pk_f16_f32 v{acc+3}, v{acc+3}, 0
    s_and_b32 s{sT1}, s{sT1}, 0xffff
    s_or_b32 s{sT2}, s{sT1}, 0x8000
    s_xor_b32 s{sT5}, s{sT1}, 0xffff
    s_bitcmp1_b32 s{sT1}, 15
    s_cselect_b32 s{sT1}, s{sT5}, s{sT2}
    s_lshl_b32 s{sT1}, s{sT1}, 16
    s_sub_u32 s{sT2}, 2047, s{sRowI}
    s_or_b32 s{sKey}, s{sT1}, s{sT2}""")
    a(f"""
    s_lshl_b32 s{sT2}, s{sW}, 4
    s_add_u32 s{sT2}, s{sT2}, {KEYS}
    s_lshl_b32 s{sT1}, s{sW}, 2
    s_add_u32 s{sT1}, s{sT1}, {LX1 + 512*40}
    s_mov_b64 exec, 1
    v_mov_b32 v120, s{sT2}
    v_mov_b32 v52, s{sKey}
    v_mov_b32 v53, s{sMb}
    v_mov_b32 v54, s{sRs}
    v_mov_b32 v55, 0
    ds_write_b128 v120, v[52:55]
    v_mov_b32 v121, s{sT1}
    ds_write_b32 v121, v{acc+3}
    s_mov_b64 exec, -1
    s_waitcnt lgkmcnt(0)
    s_barrier""")
    lab = f"Lcand_{len(a.lines)}"
    a(f"""
    s_cmp_lg_u32 s{sW}, 7
    s_cbranch_scc1 {lab}
    v_and_b32 v120, 7, v{vLane}
    v_lshlrev_b32 v120, 4, v120
    v_add_u32 v120, {KEYS}, v120
    ds_read_b128 v[52:55], v120
    s_waitcnt lgkmcnt(0)
    v_mov_b32 v56, v52
    v_max_u32_dpp v56, v56, v56 row_shr:1 row_mask:0xf bank_mask:0xf
    v_max_u32_dpp v56, v56, v56 row_shr:2 row_mask:0xf bank_mask:0xf
    v_max_u32_dpp v56, v56, v56 row_shr:4 row_mask:0xf bank_mask:0xf
    v_readlane_b32 s{sT1}, v56, 7
    v_cmp_eq_u32 vcc, s{sT1}, v52
    s_ff1_i32_b64 s{sT2}, vcc
    v_readlane_b32 s{sT5}, v53, s{sT2}
    v_readlane_b32 s{sT0}, v54, s{sT2}
    v_mov_b32 v52, s{sT1}
    v_mov_b32 v53, s{sT5}
    v_mov_b32 v54, s{sT0}
    v_mov_b32 v55, s{sNonce}
    v_lshlrev_b32 v120, 12, v{vLane}
    s_lshl_b32 s{sT1}, s2, 4
    s_add_u32 s{sT1}, s{sT1}, {WS_CANDR}
    s_mov_b64 exec, 0xff
    buffer_store_dwordx4 v[52:55], v120, {srd(R_WS)}, s{sT1} offen {FL}
    s_mov_b64 exec, -1
{lab}:""")
    Z = 68
    for ch in range(2):
        for t in range(2):
            for r in range(4):
                a(f"    v_cvt_pk_f16_f32 v{Z+8*ch+4*t+r}, v{D+16*ch+8*t+r}, v{D+16*ch+8*t+4+r}")
        for t in range(2):
            for r in range(4):
                a(f"    v_pk_mul_f16 v{D+16*ch+8*t+r}, v{Z+8*ch+4*t+r}, v{8+8*ch+4*t+r} op_sel:[0,0] op_sel_hi:[0,1]")
        for t in range(2):
            for r in range(4):
                a(f"    v_pk_fma_f16 v{Z+8*ch+4*t+r}, v{Z+8*ch+4*t+r}, v{8+8*ch+4*t+r}, v{D+16*ch+8*t+r} op_sel:[1,1,0] op_sel_hi:[1,0,1] neg_lo:[0,1,0]")
        D2 = 84 + 8*ch
        for sg in range(2):
            for rho in range(2):
                c = "0" if sg == 0 else v4(D2+4*rho)
                a(f"    v_mfma_f32_16x16x32_f16 {v4(D2+4*rho)}, {v4(32+8*sg+4*rho)}, {v4(Z+8*ch+4*sg)}, {c}")
    vWA, vRA = 118, 119
    a(f"""
    v_mul_u32_u24 v{vWA}, 40, v{vB}
    v_mul_u32_u24 v{vRA}, 2560, v{vG}
    v_add_u32 v{vWA}, v{vWA}, v{vRA}
    s_lshl_b32 s{sT1}, s{sW}, 2
    s_add_u32 s{sT1}, s{sT1}, {LX1}
    v_add_u32 v{vWA}, s{sT1}, v{vWA}
    v_mul_u32_u24 v{vRA}, 160, v{vB}
    v_lshl_add_u32 v{vRA}, v{vG}, 3, v{vRA}
    s_mul_i32 s{sT2}, s{sW}, 2560
    s_add_u32 s{sT2}, s{sT2}, {LX1}
    v_add_u32 v{vRA}, s{sT2}, v{vRA}""")
    PK = 60
    for ch in range(2):
        for rho in range(2):
            d2 = 84+8*ch+4*rho
            for d0 in range(2):
                pkreg = PK+4*ch+2*rho+d0
                a(f"    v_cvt_pk_f16_f32 v{pkreg}, v{d2+2*d0}, v{d2+2*d0+1}")
                a(f"    ds_write_b32 v{vWA}, v{pkreg} offset:{640*ch+10240*rho+1280*d0}")
    a("    s_waitcnt lgkmcnt(0)")
    if st: st.mark(a, 'm2')
    a("    s_barrier")
    for tau in range(4):
        a(f"    ds_read_b64 {v2(8+2*tau)}, v{vRA} offset:{40*tau}")
    vA = 120
    a(f"""
    s_mov_b32 s{sT1}, {2*A_JP}
    v_mul_lo_u32 v{vA}, v{vG}, s{sT1}
    v_lshrrev_b32 v122, 3, v{vB}
    v_lshlrev_b32 v122, 15, v122
    v_and_b32 v123, 7, v{vB}
    v_lshl_add_u32 v122, v123, 4, v122
    v_add_u32 v{vA}, v{vA}, v122
    s_lshl_b32 s{sA0}, s{sW}, 16
    s_lshl_b32 s{sT1}, s2, 7
    s_add_u32 s{sA0}, s{sA0}, s{sT1}
    s_add_u32 s{sA0}, s{sA0}, {WS_A}
    s_add_u32 s{sA1}, s{sA0}, {A_JP}
    s_add_u32 s{sAN}, s{sT1}, {WS_A+16*A_KP}
    v_mov_b32 v123, 0x00010001""")
    for tau in range(4):
        a(f"    s_waitcnt lgkmcnt({3-tau})")
        a(f"    v_mfma_f32_16x16x16_f16 {v4(16+4*tau)}, {v2(R8M)}, {v2(8+2*tau)}, 0")
    for e in range(2):
        for tau in range(4):
            a(f"    v_cvt_pk_f16_f32 v{32+4*e+tau}, v{16+4*tau+2*e}, v{16+4*tau+2*e+1}")
        for tau in range(4):
            a(f"    v_bfi_b32 v{32+4*e+tau}, v123, s{sTA+tau}, v{32+4*e+tau}")
        a(f"    buffer_store_dwordx4 {v4(32+4*e)}, v{vA}, {srd(R_WS)}, s{sA0 if e==0 else sA1} offen {FL}")
    lab = f"Lnyq_{len(a.lines)}"
    a(f"""
    s_cmp_lg_u32 s{sW}, 7
    s_cbranch_scc1 {lab}
    v_lshlrev_b32 v40, 3, v{vG}
    v_add_u32 v40, {LX1}, v40
    ds_read_b64 v[8:9], v40 offset:{512*40}
    s_waitcnt lgkmcnt(0)
    v_mfma_f32_16x16x16_f16 v[16:19], {v2(R8M)}, v[8:9], 0
    v_and_b32 v42, 8, v{vB}
    v_cmp_ne_u32 vcc, 0, v42
    v_cndmask_b32 v16, v16, v18, vcc
    v_cndmask_b32 v17, v17, v19, vcc
    v_cvt_pk_f16_f32 v20, v16, v17
    v_and_b32 v42, 7, v{vLane}
    v_cmp_eq_u32 vcc, 0, v42
    v_cndmask_b32 v20, 0, v20, vcc
    v_bfi_b32 v20, v123, s{sTA}, v20
    v_mov_b32 v21, s{sTA+1}
    v_mov_b32 v22, s{sTA+2}
    v_mov_b32 v23, s{sTA+3}
    v_lshrrev_b32 v43, 3, v{vLane}
    s_mov_b32 s{sT1}, {A_JP}
    v_mul_lo_u32 v43, v43, s{sT1}
    v_lshl_add_u32 v43, v42, 4, v43
    buffer_store_dwordx4 v[20:23], v43, {srd(R_WS)}, s{sAN} offen {FL}
{lab}:""")
    if st: st.mark(a, 'm3')
def fft_p2(a, st, sleepA):
    first = 0
    p2.p2_read_tables(a, TAB, first)
    lab, done = "L_pollA", "L_pollA_done"
    a(f"    s_mov_b32 s{sPoll}, 0")
    a(f"""
    s_mul_i32 s{sIn}, s{sJP}, {A_JP}
    s_lshr_b32 s{sT0}, s{sKB}, 1
    s_lshl_b32 s{sT0}, s{sT0}, 15
    s_add_u32 s{sIn}, s{sIn}, s{sT0}
    s_and_b32 s{sT0}, s{sKB}, 1
    s_lshl_b32 s{sT0}, s{sT0}, 6
    s_add_u32 s{sIn}, s{sIn}, s{sT0}
    s_lshl_b32 s{sT0}, s{sW}, 12
    s_add_u32 s{sIn}, s{sIn}, s{sT0}
    s_add_u32 s{sIn}, s{sIn}, {WS_A}
    v_lshrrev_b32 v6, 2, v{vLane}
    v_lshlrev_b32 v6, 7, v6
    v_and_b32 v7, 3, v{vLane}
    v_lshl_add_u32 v3, v7, 4, v6
    v_mov_b32 v24, 0x00010001
{lab}:
    buffer_load_dwordx4 v[8:11], v3, {srd(R_WS)}, s{sIn} offen {FL}
    buffer_load_dwordx4 v[12:15], v3, {srd(R_WS)}, s{sIn} offen offset:2048 {FL}
    s_waitcnt vmcnt(0)""")
    for k in range(8): a(f"    v_xor_b32 v{16+k}, s{sTA+(k&3)}, v{8+k}")
    a("""
    v_or_b32 v16, v16, v17
    v_or_b32 v18, v18, v19
    v_or_b32 v20, v20, v21
    v_or_b32 v22, v22, v23
    v_or_b32 v16, v16, v18
    v_or_b32 v20, v20, v22
    v_or_b32 v16, v16, v20
    v_and_b32 v16, v24, v16
    v_cmp_ne_u32 vcc, 0, v16""")
    poll_tail(a, lab, done, sleepA)
    if st: st.mark(a, 'm4')
    p2.p2_in_to_lds(a, LI)
    a("    s_waitcnt lgkmcnt(0)\n    s_barrier")
    p2.p2_compute(a, LI, LW, LO)
    if st: st.mark(a, 'm5')
    p2.p2_out(a, LO, FL)
def fft_p3(a, st, sleepB, name):
    from p3 import XR, GP, R8I, sL0, sL1, sLN, sIdx, sRsel
    first = 0
    p3.p3_issue_x(a, XR)
    r8_matrix(a, R8I, True, 112)
    p3.p3_read_tables(a, TAB, first)
    a("    s_waitcnt vmcnt(0)")
    p3.p3_gate(a)
    if st: st.mark(a, 'm6')
    if OPT["nomoe"]:
        a(f"    s_mov_b32 s86, 5000\n    s_branch L_skipI")
    a(f"""
    s_and_b32 s{sT0}, s2, 7
    s_lshl_b32 s{sT0}, s{sT0}, 7
    s_add_u32 s{sT5}, s{sT0}, {WS_IDX}
    v_mov_b32 v6, 0
    s_mov_b32 s{sPoll}, 0
L_pollI:
    buffer_load_dwordx2 v[16:17], v6, {srd(R_WS)}, s{sT5} offen {FL}
    s_waitcnt vmcnt(0)
    v_cmp_ne_u32 vcc, s{sNonce}, v17""")
    poll_tail(a, "L_pollI", "L_pollI_done", 4)
    a("    v_readfirstlane_b32 s94, v16")
    p3.key_decode(a, 94)
    if OPT["nomoe"]: a("L_skipI:")
    a(f"""
    s_lshr_b32 s{sT0}, s2, 1
    s_mul_i32 s{sL0}, s{sT0}, {B_IP}
    s_and_b32 s{sT0}, s2, 1
    s_lshl_b32 s{sT0}, s{sT0}, 6
    s_add_u32 s{sL0}, s{sL0}, s{sT0}
    s_add_u32 s{sL0}, s{sL0}, {WS_B}
    s_add_u32 s{sLN}, s{sL0}, {32*128}
    s_lshl_b32 s{sT0}, s{sW}, 9
    s_add_u32 s{sL0}, s{sL0}, s{sT0}
    s_add_u32 s{sL1}, s{sL0}, {33*128}
    s_add_u32 s{sT5}, s{sLN}, {33*128}
    v_mul_u32_u24 v6, {2*33*128}, v{vG}
    v_lshrrev_b32 v7, 2, v{vB}
    v_lshl_add_u32 v7, v7, 7, v6
    v_and_b32 v3, 3, v{vB}
    v_lshl_add_u32 v7, v3, 4, v7
    v_mov_b32 v124, 0
    v_mov_b32 v125, 0
    s_mov_b32 s{sPoll}, 0
L_pollB:
    buffer_load_dwordx4 v[8:11], v7, {srd(R_WS)}, s{sL0} offen {FL}
    buffer_load_dwordx4 v[12:15], v7, {srd(R_WS)}, s{sL1} offen {FL}
    s_cmp_lg_u32 s{sW}, 7
    s_cbranch_scc1 L_pollB_nn
    buffer_load_dword v124, v6, {srd(R_WS)}, s{sLN} offen {FL}
    buffer_load_dword v125, v6, {srd(R_WS)}, s{sT5} offen {FL}
L_pollB_nn:
    s_waitcnt vmcnt(0)
    v_max3_u32 v16, v8, v9, v10
    v_max3_u32 v17, v11, v12, v13
    v_max3_u32 v18, v14, v15, v124
    v_max3_u32 v16, v16, v17, v18
    v_max_u32 v16, v16, v125
    v_cmp_eq_u32 vcc, -1, v16""")
    poll_tail(a, "L_pollB", "L_pollB_done", sleepB)
    if st: st.mark(a, 'm7')
    p3.p3_r8(a, LX3, 8, 124)
    a("    s_waitcnt lgkmcnt(0)\n    s_barrier")
    a(f"""
    s_and_b32 s{sT0}, s{sIdx}, 255
    s_cmp_eq_u32 s{sT0}, s2
    s_cbranch_scc0 L_noown""")
    if OPT["nomoe"]: a("    s_branch L_noown")
    a(f"""
    v_and_b32 v6, 255, v0
    v_lshlrev_b32 v6, 4, v6
    v_lshrrev_b32 v7, 8, v0
    v_mul_u32_u24 v3, {7*4096}, v7
    v_add_u32 v3, v3, v6
    v_mov_b32 v16, 0xff
    s_mov_b32 s{sPoll}, 0
L_pollY:""")
    for m in range(7):
        a(f"    s_mov_b32 s{sT1}, {WS_Y + 4096*m}\n    buffer_load_dwordx4 {v4(80+4*m)}, v3, {srd(R_WS)}, s{sT1} offen {FL}")
    a(f"    s_waitcnt vmcnt(0)\n    v_mov_b32 v17, 0\n    v_mov_b32 v18, s{sTag8}")
    for k in range(28):
        a(f"    v_xor_b32 v19, v18, v{80+k}\n    v_or_b32 v17, v17, v19")
    a("    v_and_b32 v17, v16, v17\n    v_cmp_ne_u32 vcc, 0, v17")
    poll_tail(a, "L_pollY", "L_pollY_done", 4)
    for m in range(1,7):
        for k in range(4): a(f"    v_add_f32 v{80+k}, v{80+k}, v{80+4*m+k}")
    a(f"""
    v_lshl_add_u32 v6, v7, 12, v6
    ds_write_b128 v6, v[80:83] offset:{LY}
    s_waitcnt lgkmcnt(0)
    s_barrier
    s_cmp_eq_u32 s{sIdx}, s{sRowI}
    s_cbranch_scc0 L_noown""")
    p3.y_fetch(a, LY, 80)
    p3.p3_gate(a, 80)
    a(f"""
    v_mov_b32 v6, {WS_NONCE}
    v_mov_b32 v7, s{sNonce}
    s_mov_b64 exec, 1
    buffer_store_dword v7, v6, {srd(R_WS)}, 0 offen
    s_mov_b64 exec, -1
L_noown:""")
    p3.p3_rows(a, LX3, TAB, first)
    if st: st.mark(a, 'm8')
    p3.p3_final(a)
sKQ, sFBK, sFB, sCB, sM = 83, 84, 85, 87, 3
def moe_role(a, st, name):
    from p3 import sIdx, sRsel
    a(f"""
    s_sub_u32 s{sM}, s2, 256
    s_and_b32 s{sKQ}, s{sM}, 3
    s_lshr_b32 s{sFBK}, s{sM}, 2
    s_lshr_b32 s{sFB}, s{sM}, 4
    s_and_b32 s{sCB}, s{sM}, 15
    s_cmp_eq_u32 s{sW}, 7
    s_cbranch_scc1 L_mctrl""")
    a(f"""
    v_lshrrev_b32 v6, 3, v{vLane}
    v_mul_u32_u24 v6, 7168, v6
    v_and_b32 v7, 7, v{vLane}
    v_bfe_u32 v3, v{vLane}, 4, 1
    v_lshlrev_b32 v3, 1, v3
    v_xor_b32 v7, v7, v3
    v_lshl_add_u32 v6, v7, 4, v6
    s_mul_i32 s{sT2}, s{sKQ}, {256*7168}
    s_lshl_b32 s{sT0}, s{sFBK}, 7
    s_add_u32 s{sT2}, s{sT2}, s{sT0}""")
    for (R, Lb) in ((R_G, M_LG), (R_U, M_LU)):
        for sl in range(5):
            lab = f"Lmd_{R}_{sl}"
            a(f"    s_add_u32 s{sT0}, s{sW}, {7*sl}")
            if sl == 4: a(f"    s_cmp_ge_u32 s{sT0}, 32\n    s_cbranch_scc1 {lab}")
            a(f"""
    s_and_b32 s{sT1}, s{sT0}, 1
    s_lshl_b32 s{sT1}, s{sT1}, 6
    v_xor_b32 v7, s{sT1}, v6
    s_lshl_b32 s{sT1}, s{sT0}, 10
    s_add_u32 m0, s{sT1}, {Lb}
    s_mul_i32 s{sT0}, s{sT0}, {8*7168}
    s_add_u32 s{sT0}, s{sT0}, s{sT2}
    {"s_nop 0" if OPT["noweights"] else "buffer_load_dwordx4 v7, "+srd(R)+", s"+str(sT0)+" offen lds"}""")
            if sl == 4: a(f"{lab}:")
    def wdown():
        a(f"""
    s_lshl_b32 s{sT0}, s{sFB}, 8
    s_lshl_b32 s{sT1}, s{sW}, 5
    s_add_u32 s{sT0}, s{sT0}, s{sT1}
    s_lshl_b32 s{sT0}, s{sT0}, 11
    s_lshl_b32 s{sT1}, s{sCB}, 7
    s_add_u32 s{sT0}, s{sT0}, s{sT1}
    v_lshrrev_b32 v6, 3, v{vLane}
    v_lshlrev_b32 v6, 11, v6
    v_and_b32 v7, 7, v{vLane}
    v_lshl_add_u32 v6, v7, 4, v6""")
        for m in range(4):
            if not OPT["noweights"]: a(f"    s_add_u32 s{sT1}, s{sT0}, {8*2048*m}\n    buffer_load_dwordx4 {v4(100+4*m)}, v6, {srd(R_D)}, s{sT1} offen")
    wdown()
    a("    s_branch L_mjoin")
    a(f"""
L_mctrl:
    s_and_b32 s{sT0}, s{sM}, 7
    s_lshl_b32 s{sT0}, s{sT0}, 12
    s_add_u32 s{sT5}, s{sT0}, {WS_CANDR}
    s_mov_b32 s{sPoll}, 0
L_pollC:""")
    for q in range(4):
        a(f"    buffer_load_dwordx4 {v4(8+4*q)}, v{vL16}, {srd(R_WS)}, s{sT5} offen offset:{1024*q} {FL}")
    a(f"""
    s_waitcnt vmcnt(0)
    v_xor_b32 v24, s{sNonce}, v11
    v_xor_b32 v25, s{sNonce}, v15
    v_xor_b32 v26, s{sNonce}, v19
    v_xor_b32 v27, s{sNonce}, v23
    v_or_b32 v24, v24, v25
    v_or_b32 v26, v26, v27
    v_or_b32 v24, v24, v26
    v_cmp_ne_u32 vcc, 0, v24""")
    poll_tail(a, "L_pollC", "L_pollC_done", OPT["ctrl_sleep"])
    if st: a(f"    s_memrealtime s[52:53]")
    a("""
    v_max3_u32 v24, v8, v12, v16
    v_max_u32 v24, v24, v20""")
    for m in ("row_shr:1 row_mask:0xf","row_shr:2 row_mask:0xf","row_shr:4 row_mask:0xf","row_shr:8 row_mask:0xf","row_bcast:15 row_mask:0xa","row_bcast:31 row_mask:0xc"):
        a(f"    v_max_u32_dpp v24, v24, v24 {m} bank_mask:0xf")
    a(f"""
    v_readlane_b32 s94, v24, 63
    v_cmp_eq_u32 vcc, s94, v12
    v_cndmask_b32 v9, v9, v13, vcc
    v_cndmask_b32 v10, v10, v14, vcc
    v_cndmask_b32 v8, v8, v12, vcc
    v_cmp_eq_u32 vcc, s94, v16
    v_cndmask_b32 v9, v9, v17, vcc
    v_cndmask_b32 v10, v10, v18, vcc
    v_cndmask_b32 v8, v8, v16, vcc
    v_cmp_eq_u32 vcc, s94, v20
    v_cndmask_b32 v9, v9, v21, vcc
    v_cndmask_b32 v10, v10, v22, vcc
    v_cndmask_b32 v8, v8, v20, vcc
    v_cmp_eq_u32 vcc, s94, v8
    s_ff1_i32_b64 s{sT2}, vcc
    v_readlane_b32 s{sT0}, v9, s{sT2}
    v_readlane_b32 s{sT1}, v10, s{sT2}
    v_mov_b32 v8, s94
    v_mov_b32 v9, s{sT0}
    v_mov_b32 v10, s{sT1}
    v_mov_b32 v11, s{sNonce}
    v_mov_b32 v6, {M_CTRL}
    s_mov_b64 exec, 1
    ds_write_b128 v6, v[8:11]
    s_mov_b64 exec, -1
    s_cmp_ge_u32 s{sM}, 8
    s_cbranch_scc1 L_nopub
    v_mov_b32 v9, s{sNonce}
    s_lshl_b32 s{sT0}, s{sM}, 7
    s_add_u32 s{sT0}, s{sT0}, {WS_IDX}
    v_mov_b32 v6, 0
    s_mov_b64 exec, 1
    buffer_store_dwordx2 v[8:9], v6, {srd(R_WS)}, s{sT0} offen {FL}
    s_mov_b64 exec, -1
L_nopub:""")
    wdown()
    a(f"""
L_mjoin:
    s_waitcnt lgkmcnt(0)
    s_barrier""")
    if st: st.mark(a, 'm9')
    a(f"""
    v_mov_b32 v6, {M_CTRL}
    ds_read_b128 v[8:11], v6
    s_waitcnt lgkmcnt(0)
    v_readfirstlane_b32 s94, v8
    v_readfirstlane_b32 s{sMb}, v9
    v_readfirstlane_b32 s{sRs}, v10
    s_and_b32 s{sT0}, s94, 0x7ff
    s_sub_u32 s{sT0}, 2047, s{sT0}
    s_lshl_b32 s{sT0}, s{sT0}, 11
    s_lshl_b32 s{sT1}, s{sKQ}, 9
    s_add_u32 s{sT0}, s{sT0}, s{sT1}
    s_lshl_b32 s{sT1}, s{sW}, 6
    s_add_u32 s{sT0}, s{sT0}, s{sT1}
    v_lshlrev_b32 v6, 4, v{vG}
    buffer_load_dwordx4 v[8:11], v6, {srd(R_X)}, s{sT0} offen
    s_waitcnt vmcnt(0)""")
    for d in range(4):
        z0, z1 = 12+2*d, 13+2*d
        a(f"""
    v_lshlrev_b32 v{z0}, 16, v{8+d}
    v_and_b32 v{z1}, 0xffff0000, v{8+d}
    v_subrev_f32 v{z0}, s{sMb}, v{z0}
    v_subrev_f32 v{z1}, s{sMb}, v{z1}
    v_cvt_pk_bf16_f32 v{z0}, v{z0}, v{z1}
    v_and_b32 v{z1}, 0xffff0000, v{z0}
    v_lshlrev_b32 v{z0}, 16, v{z0}
    v_mul_f32 v{z0}, s{sRs}, v{z0}
    v_mul_f32 v{z1}, s{sRs}, v{z1}
    v_cvt_pk_bf16_f32 v{20+d}, v{z0}, v{z1}""")
    a("    s_barrier")
    if st: st.mark(a, 'm10')
    a(f"""
    v_bfe_u32 v3, v{vLane}, 2, 2            ; r
    v_lshlrev_b32 v6, 3, v{vG}
    v_add_u32 v6, v6, v3
    v_lshlrev_b32 v6, 7, v6                 ; (8g+r)*128
    v_and_b32 v7, 3, v{vLane}
    v_lshl_add_u32 v6, v7, 3, v6            ; + 8c
    v_lshrrev_b32 v3, 1, v3                 ; r>>1
    v_and_b32 v7, 1, v{vG}
    v_lshl_add_u32 v3, v7, 1, v3            ; h
    v_lshl_add_u32 v6, v3, 5, v6
    s_lshl_b32 s{sT0}, s{sW}, 12
    v_add_u32 v6, s{sT0}, v6""")
    for ct in range(4):
        a(f"    v_xor_b32 v{24+ct}, {32*ct}, v6")
    for mat, Lb in enumerate((M_LG, M_LU)):
        for ct in range(4):
            b = 32+16*mat+4*ct
            a(f"    ds_read_b64_tr_b16 {v2(b)}, v{24+ct} offset:{Lb}")
            a(f"    ds_read_b64_tr_b16 {v2(b+2)}, v{24+ct} offset:{Lb+512}")
    for mat in range(2):
        a(f"    s_waitcnt lgkmcnt({8-8*mat})")
        for ct in range(4):
            a(f"    v_mfma_f32_16x16x32_bf16 {v4(64+16*mat+4*ct)}, v[20:23], {v4(32+16*mat+4*ct)}, 0")
    a(f"""
    v_lshlrev_b32 v6, 2, v{vB}
    s_lshl_b32 s{sT0}, s{sW}, 9
    s_add_u32 s{sT0}, s{sT0}, {M_RED}
    v_add_u32 v6, s{sT0}, v6
    s_mov_b64 exec, 0xffff""")
    for mat in range(2):
        for ct in range(4):
            a(f"    ds_write_b32 v6, v{64+16*mat+4*ct} offset:{256*mat+64*ct}")
    a(f"""
    s_mov_b64 exec, -1
    s_waitcnt lgkmcnt(0)
    s_barrier
    s_cmp_ge_u32 s{sW}, 2
    s_cbranch_scc1 L_mnopart
    v_lshlrev_b32 v6, 2, v{vLane}
    s_lshl_b32 s{sT0}, s{sW}, 8
    v_add_u32 v7, s{sT0}, v6""")
    for w in range(8): a(f"    ds_read_b32 v{8+w}, v7 offset:{M_RED+512*w}")
    a("    s_waitcnt lgkmcnt(0)")
    for w in range(1,8): a(f"    v_add_f32 v8, v8, v{8+w}")
    a(f"""
    v_mov_b32 v9, 0xff
    v_bfi_b32 v8, v9, s{sTag8}, v8
    s_lshl_b32 s{sT0}, s{sKQ}, 1
    s_add_u32 s{sT0}, s{sT0}, s{sW}
    s_mul_i32 s{sT0}, s{sT0}, {3584*4}
    s_lshl_b32 s{sT1}, s{sFBK}, 8
    s_add_u32 s{sT0}, s{sT0}, s{sT1}
    s_add_u32 s{sT0}, s{sT0}, {WS_PART}
    buffer_store_dword v8, v6, {srd(R_WS)}, s{sT0} offen {FL}
L_mnopart:""")
    if st: st.mark(a, 'm11')
    a(f"""
    s_mul_i32 s{sT5}, s{sW}, {3584*4}
    s_lshl_b32 s{sT1}, s{sFB}, 10
    s_add_u32 s{sT5}, s{sT5}, s{sT1}
    s_add_u32 s{sT5}, s{sT5}, {WS_PART}
    v_mov_b32 v16, 0xff
    s_mov_b32 s{sPoll}, 0
L_pollP:
    buffer_load_dwordx4 v[8:11], v{vL16}, {srd(R_WS)}, s{sT5} offen {FL}
    s_waitcnt vmcnt(0)
    v_xor_b32 v12, s{sTag8}, v8
    v_xor_b32 v13, s{sTag8}, v9
    v_xor_b32 v14, s{sTag8}, v10
    v_xor_b32 v15, s{sTag8}, v11
    v_or_b32 v12, v12, v13
    v_or_b32 v14, v14, v15
    v_or_b32 v12, v12, v14
    v_and_b32 v12, v16, v12
    v_cmp_ne_u32 vcc, 0, v12""")
    poll_tail(a, "L_pollP", "L_pollP_done", 4)
    if st: st.mark(a, 'partsready')
    a(f"""
    s_lshl_b32 s{sT0}, s{sW}, 10
    s_add_u32 s{sT0}, s{sT0}, {M_SEG}
    v_add_u32 v6, s{sT0}, v{vL16}
    ds_write_b128 v6, v[8:11]
    s_waitcnt lgkmcnt(0)
    s_barrier
    s_cmp_ge_u32 s{sW}, 4
    s_cbranch_scc1 L_mnoh
    v_lshlrev_b32 v6, 2, v{vLane}
    s_lshl_b32 s{sT0}, s{sW}, 8
    v_add_u32 v6, s{sT0}, v6""")
    for q in range(8): a(f"    ds_read_b32 v{8+q}, v6 offset:{M_SEG+1024*q}")
    a(f"""
    s_waitcnt lgkmcnt(0)
    v_add_f32 v8, v8, v10
    v_add_f32 v9, v9, v11
    v_add_f32 v12, v12, v14
    v_add_f32 v13, v13, v15
    v_add_f32 v8, v8, v12
    v_add_f32 v16, v9, v13
    v_cvt_pk_bf16_f32 v8, v8, v16
    v_and_b32 v16, 0xffff0000, v8
    v_lshlrev_b32 v8, 16, v8
    s_mov_b32 s{sT0}, 0xbfb8aa3b""")
    p3.silu_pair(a, 8, 8, 9, 10, 11, sT0)
    a(f"""
    v_lshlrev_b32 v11, 16, v11
    v_mul_f32 v11, v11, v16
    v_cvt_pk_bf16_f32 v11, v11, v11
    v_lshlrev_b32 v11, 16, v11
    ds_write_b32 v6, v11 offset:{M_H}
L_mnoh:
    s_waitcnt lgkmcnt(0)
    s_barrier""")
    H = 24
    a(f"""
    v_lshrrev_b32 v6, 3, v{vLane}
    v_lshlrev_b32 v6, 2, v6
    s_lshl_b32 s{sT0}, s{sW}, 7
    v_add_u32 v6, s{sT0}, v6""")
    for m in range(4): a(f"    ds_read_b32 v{H+m}, v6 offset:{M_H+32*m}")
    a("    s_waitcnt lgkmcnt(0)")
    old = moe.WD2; moe.WD2 = 100
    moe.g2_compute(a, M_RED, H)
    moe.WD2 = old
    a(f"""
    s_waitcnt lgkmcnt(0)
    s_barrier
    s_cmp_lg_u32 s{sW}, 0
    s_cbranch_scc1 L_mend
    v_lshlrev_b32 v6, 2, v{vLane}""")
    for w in range(8): a(f"    ds_read_b32 v{8+w}, v6 offset:{M_RED+256*w}")
    a("    s_waitcnt lgkmcnt(0)")
    for w in range(1,8): a(f"    v_add_f32 v8, v8, v{8+w}")
    a(f"""
    v_mov_b32 v9, 0xff
    v_bfi_b32 v8, v9, s{sTag8}, v8
    s_lshl_b32 s{sT0}, s{sFB}, 12
    s_lshl_b32 s{sT1}, s{sCB}, 8
    s_add_u32 s{sT0}, s{sT0}, s{sT1}
    s_add_u32 s{sT0}, s{sT0}, {WS_Y}
    buffer_store_dword v8, v6, {srd(R_WS)}, s{sT0} offen {FL}
L_mend:""")
def kernel_mega(name, st=None, sleepA=8, sleepB=8, stm=None):
    a = Asm()
    if st: a('    s_memrealtime s[92:93]')
    a(f"""
    s_cmp_ge_u32 s2, 488
    s_cbranch_scc1 {name}_end""")
    load_args(a); lane_setup(a); mk_table_srd(a, name)
    a(f"""
    s_mov_b32 s{sRole}, 0
    s_waitcnt lgkmcnt(0)
    s_load_dword s{sNonce}, s[24:25], {WS_NONCE}
    s_cmp_ge_u32 s2, 256
    s_cbranch_scc1 L_second""")
    if st:
        r = st.pairs[0]; a(f"    s_mov_b32 s{r}, s92"); st.n = 1; st.names = ["start"]
    mk_srd(a, R_X, S_X, 4194304); mk_srd(a, R_BW, S_BW, 2048)
    a(f"""
    s_lshl_b32 s{sRowI}, s{sW}, 8
    s_add_u32 s{sRowI}, s{sRowI}, s2
    s_lshl_b32 s{sRow}, s{sRowI}, 11
    v_lshlrev_b32 v{vXo}, 9, v{vG}
    v_lshl_add_u32 v{vXo}, v{vB}, 2, v{vXo}""")
    for q in range(8): a(f"    buffer_load_dword v{8+q}, v{vXo}, {srd(R_X)}, s{sRow} offen offset:{64*q}")
    dma_all_tables(a, (0,1))
    for q in range(8): a(f"    buffer_load_dword v{16+q}, v{vXo}, {srd(R_BW)}, 0 offen offset:{64*q}")
    mk_srd(a, R_WS, S_WS, WS_SIZE); mk_srd(a, R_WR, S_WR, 2101248); mk_srd(a, R_WI, S_WI, 2101248); mk_srd(a, R_OUT, S_OUT, 4194304)
    dma_all_tables(a, (2,3,4))
    p2.p2_ids(a)
    if not OPT['now']: p2.p2_issue_w(a, 84, 92)
    else: a("    s_mov_b32 s87, 0")
    if not OPT['noclean']: clean_b(a)
    a("    s_waitcnt lgkmcnt(0)")
    derive_tags(a)
    fft_p1(a, st)
    a("L_p2entry:")
    fft_p2(a, st, sleepA)
    a(f"    s_cmp_eq_u32 s{sRole}, 1\n    s_cbranch_scc1 L_fin")
    fft_p3(a, st, sleepB, name)
    if st: st.flush(a)
    a("    s_branch L_fin")
    a("L_second:")
    mk_srd(a, R_WS, S_WS, WS_SIZE); mk_srd(a, R_X, S_X, 4194304)
    a(f"    s_cmp_ge_u32 s2, 480\n    s_cbranch_scc1 L_nyqtask")
    mk_srd(a, R_G, S_G, 1024*7168); mk_srd(a, R_U, S_U, 1024*7168); mk_srd(a, R_D, S_D, 3584*2048)
    a("    s_waitcnt lgkmcnt(0)")
    derive_tags(a)
    if OPT["nomoe"]: a("    s_branch L_fin")
    if stm:
        r = stm.pairs[0]; a(f"    s_mov_b32 s{r}, s92"); stm.n = 1; stm.names = ["start"]
    moe_role(a, stm, name)
    if stm: stm.flush(a)
    a("    s_branch L_fin")
    a("L_nyqtask:")
    mk_srd(a, R_WR, S_WR, 2101248); mk_srd(a, R_WI, S_WI, 2101248); mk_srd(a, R_OUT, S_OUT, 4194304)
    a(f"    s_mov_b32 s{sRole}, 1\n    s_and_b32 s{sJP}, s2, 7\n    s_mov_b32 s{sKB}, 32")
    dma_all_tables(a, (0,1,2,3,4))
    p2.p2_issue_w(a, 84, 92)
    a("    s_waitcnt vmcnt(0) lgkmcnt(0)")
    derive_tags(a)
    p2.p2_w_to_lds(a, LW, 84, 92)
    a("    s_waitcnt lgkmcnt(0)\n    s_barrier\n    s_branch L_p2entry")
    a("L_fin:")
    a(f"{name}_end:\n    s_endpgm")
    return a, 128, LDS_BYTES
```

```python
from common import *
WS_STAMP = 0xC00000
class Stamper:
    def __init__(self, kidx, pairs, enabled=True):
        self.k = kidx; self.n = 0; self.pairs = pairs if isinstance(pairs, list) else list(range(pairs, pairs+16, 2)); self.names = []
    def mark(self, a, name=""):
        r = self.pairs[self.n]
        a(f"    s_memrealtime s[{r}:{r+1}]")
        self.n += 1; self.names.append(name)
    def flush(self, a):
        lab = f"Lstf_{self.k}_{len(a.lines)}"
        a("    s_waitcnt vmcnt(0) lgkmcnt(0)")
        self.mark(a, "end")
        a(f"""
    s_waitcnt lgkmcnt(0)
    s_mov_b64 exec, -1
    v_and_b32 v1, 63, v0
    v_cmp_eq_u32 vcc, 0, v1
    s_and_b64 exec, exec, vcc
    s_cbranch_execz {lab}
    s_lshl_b32 s101, s2, 3
    s_add_u32 s101, s101, s68
    s_lshl_b32 s101, s101, 6
    s_add_u32 s101, s101, {WS_STAMP + self.k*0x40000}
    v_mov_b32 v1, s101""")
        for i in range(self.n):
            a(f"    v_mov_b32 v2, s{self.pairs[i]}\n    buffer_store_dword v2, v1, {srd(R_WS)}, 0 offen offset:{4*i}")
        a(f"{lab}:")

class DbgStamper(Stamper):
    def flush(self, a):
        lab = f"Lstf_{self.k}_{len(a.lines)}"
        a("    s_waitcnt vmcnt(0) lgkmcnt(0)")
        self.mark(a, "end")
        a(f"""
    s_waitcnt lgkmcnt(0)
    s_lshl_b32 s101, s2, 3
    s_add_u32 s101, s101, s68
    s_cmp_lg_u32 s101, 0
    s_cbranch_scc1 {lab}
    s_mov_b32 s28, s22
    s_mov_b32 s29, s23
    s_mov_b32 s30, 256
    s_mov_b32 s31, 0x00020000
    s_mov_b64 exec, 1
    v_mov_b32 v1, {64*self.k}""")
        for i in range(self.n):
            a(f"    s_sub_u32 s101, s{self.pairs[i]}, s{self.pairs[0]}\n    v_mov_b32 v2, s101\n    buffer_store_dword v2, v1, s[28:31], 0 offen offset:{4*i}")
        a(f"{lab}:")
```

```python
from build import *
import p3, p1
p3.sMb, p3.sRs = 81, 82
from mega import *
from stamps import *
import sys, mega
NAME = "recurrent_scan__spectral_gfnet__moe_arch_mod__prompt_kernel"
st = DbgStamper(0, [56,58,60,62,64,66,4,6,8,10,12])
a, vg, lds = kernel_mega(NAME, st)
assemble_list([(NAME, a, vg)], [(NAME, 488, 512, lds)], "mega_dbg.s", classic=True)
```
